```python
import torch

def _softmax(x, axis=-1):
    return torch.softmax(x, dim=axis)

def _gelu(x):
    return torch.nn.functional.gelu(x, approximate='tanh')

def _silu(x):
    return torch.nn.functional.silu(x)

def _sigmoid(x):
    return torch.sigmoid(x)

def _layernorm(x, axis=-1, eps=1e-05):
    m = x.mean(dim=axis, keepdim=True)
    v = x.var(dim=axis, keepdim=True, unbiased=False)
    return (x - m) / torch.sqrt(v + eps)

def _scatter_add(tgt, idx, src, axis=0):
    return tgt.clone().index_add_(axis, idx, src)

def _segment_sum(src, seg, n):
    out = torch.zeros((n,) + src.shape[1:], dtype=src.dtype)
    return out.index_add_(0, seg, src)

def _pad(x, pw):
    flat = tuple((v for pair in reversed(pw) for v in pair))
    return torch.nn.functional.pad(x, flat)
kernel_name = 'adaLN_cond__ssm_conv_h3__dense_activation_silu__prompt'

def setup_inputs():

    _w = lambda a: (lambda t: t.to(torch.bfloat16) if t.is_floating_point() else t)(torch.as_tensor(a))

    def _A_setup():
        B, S, D = (1, 2048, 448)
        ks = 4
        return {'q': _w((lambda *s: torch.randn(*s, dtype=torch.bfloat16) * 0.05)(B, S, D)), 'k': _w((lambda *s: torch.randn(*s, dtype=torch.bfloat16) * 0.8)(B, S, D)), 'v': _w((lambda *s: torch.randn(*s, dtype=torch.bfloat16) * 0.8)(B, S, D)), 'shift_k': _w((lambda *s: torch.randn(*s, dtype=torch.bfloat16) * 0.8)(D, ks) * 0.5), 'ssm_k': _w((lambda *s: torch.randn(*s, dtype=torch.bfloat16) * 0.8)(D, S) * (1.0 / S ** 0.5)), 'ssm_D': _w((lambda *s: torch.randn(*s, dtype=torch.bfloat16) * 0.8)(D))}
    _A_in = _A_setup()

    def _B_setup():
        B, S, D, F = (1, 2048, 448, 1792)
        return {'x': _w((lambda *s: torch.randn(*s, dtype=torch.bfloat16) * 0.05)(B, S, D)), 'w1': _w((lambda *s: torch.randn(*s, dtype=torch.bfloat16) * 3.2)(D, F) * D ** (-0.5)), 'w2': _w((lambda *s: torch.randn(*s, dtype=torch.bfloat16) * 0.8)(F, D) * F ** (-0.5))}
    _B_in = _B_setup()
    return {'A_q': _A_in['q'], 'A_k': _A_in['k'], 'A_v': _A_in['v'], 'A_shift_k': _A_in['shift_k'], 'A_ssm_k': _A_in['ssm_k'], 'A_ssm_D': _A_in['ssm_D'], 'B_x': _B_in['x'], 'B_w1': _B_in['w1'], 'B_w2': _B_in['w2'], 'c': _w((lambda *s: torch.randn(*s, dtype=torch.bfloat16) * 0.2)(1, 448) * 8.0), 'w_mod': _w((lambda *s: torch.randn(*s, dtype=torch.bfloat16) * 0.2)(448, 6 * 448) * 448 ** (-0.5) * 8.0)}

def reference(A_q, A_k, A_v, A_shift_k, A_ssm_k, A_ssm_D, B_x, B_w1, B_w2, c, w_mod):

    def _A_ref(q, k, v, shift_k, ssm_k, ssm_D):
        B, S, D = q.shape
        ks = shift_k.shape[-1]
        k_pad = _pad(k, ((0, 0), (ks - 1, 0), (0, 0)))
        k_shift = torch.zeros_like(k)
        for t in range(ks):
            k_shift = k_shift + k_pad[:, t:t + S, :] * shift_k[:, ks - 1 - t][None, None, :]
        kv = k_shift * v
        L = 2 * S
        kv_pad = _pad(kv, ((0, 0), (0, S), (0, 0)))
        kf_pad = _pad(ssm_k, ((0, 0), (0, S)))
        kv_f = (lambda x, axes=(-2, -1): torch.fft.rfft2(x.float(), dim=axes))(kv_pad[:, None, :, :], axes=(1, 2))
        kf_f = (lambda x, axes=(-2, -1): torch.fft.rfft2(x.float(), dim=axes))(kf_pad[:, None, :], axes=(1, 2))
        kf_f = (lambda x, *d: x.permute(*d))(kf_f, 1, 2, 0)
        y_f = kv_f * kf_f[None, :, :, :]
        y = (lambda x, s, axes=(-2, -1): torch.fft.irfft2(x, s=s, dim=axes).to(torch.bfloat16))(y_f, (1, L), axes=(1, 2))[:, 0, :S, :]
        y = y + kv * ssm_D[None, None, :]
        return q * y

    def _B_ref(x, w1, w2):
        h = torch.einsum('bsd,df->bsf', x, w1)
        h = _silu(h)
        out = torch.einsum('bsf,fd->bsd', h, w2)
        return out
    x = A_q
    mod = (_silu(c) @ w_mod).reshape(c.shape[0], 6, 1, -1)
    sa, ca, ga, sb, cb, gb = (mod[:, 0].clone(), mod[:, 1].clone(), mod[:, 2].clone(), mod[:, 3].clone(), mod[:, 4].clone(), mod[:, 5].clone())
    h = _layernorm(x, axis=-1) * (1 + ca) + sa
    x = x + ga * _A_ref(h, A_k, A_v, A_shift_k, A_ssm_k, A_ssm_D)
    h = _layernorm(x, axis=-1) * (1 + cb) + sb
    x = x + gb * _B_ref(h, B_w1, B_w2)
    return x
```

```python
import re

REG_RE = re.compile(r'^(-?\|?|abs\()?([vas])(\d+)\)?\|?$')
RNG_RE = re.compile(r'^(-?\|?|abs\()?([vas])\[(\d+):(\d+)\]\)?\|?$')

def regs_of(tok):
    tok = tok.strip()
    m = RNG_RE.match(tok)
    if m:
        return [(m.group(2), i) for i in range(int(m.group(3)), int(m.group(4)) + 1)]
    m = REG_RE.match(tok)
    if m:
        return [(m.group(2), int(m.group(3)))]
    if tok == 'vcc': return [('s', 106), ('s', 107)]
    if tok == 'vcc_lo': return [('s', 106)]
    if tok == 'vcc_hi': return [('s', 107)]
    if tok == 'exec': return [('s', 126), ('s', 127)]
    if tok == 'm0': return [('s', 124)]
    return []

TRANS = ('v_exp_f32', 'v_log_f32', 'v_rcp_f32', 'v_rsq_f32', 'v_sqrt_f32', 'v_sin_f32', 'v_cos_f32', 'v_rcp_iflag_f32')

class Ins:
    __slots__ = ('text', 'mn', 'ops', 'kind', 'rd', 'wr', 'label', 'target', 'dpp', 'sdwa_dst', 'passes', 'srcC')
    def __init__(self, text):
        self.text = text
        self.label = None; self.target = None
        self.rd = set(); self.wr = set(); self.kind = 'other'; self.dpp = False; self.sdwa_dst = False
        self.passes = 0; self.srcC = set()
        t = text.split(';')[0].strip()
        if t.endswith(':'):
            self.label = t[:-1]; self.kind = 'label'; self.mn = ''; self.ops = []; return
        if t.startswith('.') or t == '':
            self.kind = 'dir'; self.mn = ''; self.ops = []; return
        parts = t.split(None, 1)
        self.mn = mn = parts[0]
        rest = parts[1] if len(parts) > 1 else ''
        ops = []; depth = 0; cur = ''
        for ch in rest:
            if ch in '[(': depth += 1
            if ch in '])': depth -= 1
            if ch == ',' and depth == 0:
                ops.append(cur.strip()); cur = ''
            else:
                cur += ch
        if cur.strip(): ops.append(cur.strip())
        mods = ''
        if ops:
            last = ops[-1].split()
            if len(last) > 1:
                ops[-1] = last[0]; mods = ' '.join(last[1:])
        self.ops = ops
        R = regs_of
        base = mn.replace('_e32', '').replace('_e64', '').replace('_dpp', '').replace('_sdwa', '')
        if mn.startswith('v_mfma'):
            self.kind = 'mfma'
            self.passes = 8 if '32x32' in mn else 4
            self.wr = set(R(ops[0])); self.rd = set(R(ops[1]) + R(ops[2]) + R(ops[3])); self.srcC = set(R(ops[3]))
        elif mn.startswith('v_'):
            self.kind = 'valu'
            self.dpp = ('_dpp' in mn) or ('row_' in mods) or ('quad_perm' in mods)
            self.sdwa_dst = ('dst_sel:WORD' in mods) or ('dst_sel:BYTE' in mods)
            if base.startswith('v_cmp'):
                self.wr = set(R(ops[0]));
                for o in ops[1:]: self.rd |= set(R(o))
                if base.startswith('v_cmpx'): self.wr |= set(R('exec'))
            elif base in ('v_add_co_u32', 'v_sub_co_u32', 'v_addc_co_u32', 'v_subb_co_u32', 'v_subrev_co_u32'):
                self.wr = set(R(ops[0]) + R(ops[1]))
                for o in ops[2:]: self.rd |= set(R(o))
            elif base.startswith('v_permlane') and 'swap' in base:
                self.wr = set(R(ops[0]) + R(ops[1])); self.rd = set(self.wr)
            else:
                self.wr = set(R(ops[0]))
                for o in ops[1:]: self.rd |= set(R(o))
                if base in ('v_fmac_f32', 'v_dot2c_f32_bf16', 'v_pk_fmac_f16', 'v_mac_f32', 'v_writelane_b32') or self.dpp or self.sdwa_dst and 'UNUSED_PRESERVE' in mods:
                    self.rd |= set(R(ops[0]))
            if base in TRANS: self.kind = 'trans'
            self.rd |= set(R('exec'))
        elif mn.startswith('buffer_') or mn.startswith('global_'):
            lds = (' lds' in ' ' + mods) or ('_lds_' in mn)
            if mn.startswith('buffer_wbl2') or mn.startswith('buffer_inv'):
                self.kind = 'vmem'
            elif 'store' in mn:
                self.kind = 'vstore'
                for o in ops: self.rd |= set(R(o))
            elif 'atomic' in mn:
                self.kind = 'vmem'
                for o in ops: self.rd |= set(R(o))
                if 'sc0' in mods: self.wr = set(R(ops[0]))
            elif lds:
                self.kind = 'vmemlds'
                for o in ops: self.rd |= set(R(o))
                self.rd |= set(R('m0'))
            else:
                self.kind = 'vload'
                self.wr = set(R(ops[0]))
                for o in ops[1:]: self.rd |= set(R(o))
                if 'd16' in mn: self.rd |= set(R(ops[0]))
        elif mn.startswith('ds_'):
            if mn.startswith('ds_read') or mn.startswith('ds_bpermute') or mn.startswith('ds_swizzle') or mn.startswith('ds_permute'):
                self.kind = 'dsread'
                self.wr = set(R(ops[0]))
                for o in ops[1:]: self.rd |= set(R(o))
            else:
                self.kind = 'dswrite'
                for o in ops: self.rd |= set(R(o))
        elif mn.startswith('s_'):
            self.kind = 'salu'
            if mn in ('s_branch',) or mn.startswith('s_cbranch'):
                self.kind = 'branch'; self.target = ops[0]
            elif mn in ('s_waitcnt', 's_barrier', 's_endpgm', 's_sleep', 's_setprio'):
                self.kind = 'misc'
            elif mn == 's_nop':
                self.kind = 'nop'
            elif mn.startswith('s_cmp'):
                for o in ops: self.rd |= set(R(o))
            elif mn.startswith('s_load') or mn in ('s_memtime', 's_memrealtime'):
                self.kind = 'smem'
                self.wr = set(R(ops[0]))
                for o in ops[1:]: self.rd |= set(R(o))
            else:
                self.wr = set(R(ops[0]))
                for o in ops[1:]: self.rd |= set(R(o))
                if 'saveexec' in mn:
                    self.wr |= set(R('exec')); self.rd |= set(R('exec'))
    def states(self):
        if self.kind == 'nop':
            return int(self.ops[0], 0) + 1
        if self.kind in ('label', 'dir'):
            return 0
        return 1

def isv(r): return r[0] in ('v', 'a')
def iss(r): return r[0] == 's'

def need(p, c):
    n = 0
    pv = {r for r in p.wr if isv(r)}; ps = {r for r in p.wr if iss(r)}
    pvalu = p.kind in ('valu', 'trans')
    cvalu = c.kind in ('valu', 'trans')
    if pvalu:
        if c.kind == 'mfma' and (pv & c.rd): n = max(n, 2)
        if ps:
            if c.kind in ('vload', 'vstore', 'vmem', 'vmemlds') and (ps & c.rd): n = max(n, 5)
            if cvalu:
                cs = {r for r in c.rd if iss(r) and r[1] not in (126, 127)}
                if ps & cs:
                    n = max(n, 4 if c.mn.startswith('v_readlane') or c.mn.startswith('v_writelane') else 2)
                if (('s', 126) in ps or ('s', 127) in ps) and c.dpp: n = max(n, 5)
            if c.kind == 'mfma' and (('s', 126) in ps): n = max(n, 4)
        if cvalu and (pv & c.rd):
            if c.mn.startswith('v_readfirstlane') or c.mn.startswith('v_readlane'): n = max(n, 1)
            if c.dpp: n = max(n, 2)
            if c.mn.startswith('v_permlane'): n = max(n, 2)
            if p.kind == 'trans' and c.kind != 'trans': n = max(n, 1)
            if p.kind == 'trans' and c.kind == 'trans': n = max(n, 1)
            if p.sdwa_dst: n = max(n, 1)
    if p.kind == 'mfma':
        lat = {4: 8, 8: 12}[p.passes]; ovl = {4: 6, 8: 10}[p.passes]; war = {4: 3, 8: 7}[p.passes]
        if c.kind == 'mfma':
            ab = c.rd - c.srcC
            a_regs = set(regs_of(c.ops[1]) + regs_of(c.ops[2]))
            if pv & a_regs: n = max(n, lat)
            if pv & c.srcC:
                if not (pv == c.srcC and p.passes == c.passes): n = max(n, ovl)
            elif pv & c.wr:
                n = max(n, lat)
        else:
            if (pv & c.rd) or (pv & c.wr): n = max(n, lat)
            if cvalu and (p.srcC & c.wr): n = max(n, war)
    if p.kind == 'salu' and ('s', 124) in ps and (c.kind == 'vmemlds'): n = max(n, 1)
    if p.kind == 'vstore' and ('x4' in p.mn or 'x3' in p.mn) and (cvalu or c.kind in ('vload', 'dsread')):
        data = set(regs_of(p.ops[0])) if p.mn.startswith('buffer') else set(regs_of(p.ops[1]))
        if data & c.wr: n = max(n, 2 if cvalu else 1)
    if p.kind == 'dswrite' and ('b128' in p.mn or 'b96' in p.mn) and cvalu:
        data = set(regs_of(p.ops[1]))
        if data & c.wr: n = max(n, 2)
    return n

class Asm:
    def __init__(self):
        self.ins = []
        self.nlabel = 0
    def __call__(self, text):
        for line in text.split('\n'):
            line = line.strip()
            if line:
                self.ins.append(Ins(line))
    def label(self, name):
        self.ins.append(Ins(name + ':'))
    def newlabel(self, base):
        self.nlabel += 1
        return f"{base}_{self.nlabel}"
    def comment(self, s):
        self.ins.append(Ins('; ' + s))

    def _fix(self, seq_idx, ins, insert_at):
        pass

    def hazards(self):
        WIN = 24
        changed = True
        nins = 0
        while changed:
            changed = False
            ins = self.ins
            labels = {x.label: i for i, x in enumerate(ins) if x.label}
            preds = {}
            for i, x in enumerate(ins):
                if x.kind == 'branch' and x.target in labels:
                    preds.setdefault(labels[x.target], []).append(i)
            def back_paths(i, budget, seen):
                out = []
                stack = [(i, 0)]
                visited = set()
                while stack:
                    j, d = stack.pop()
                    if (j, d) in visited: continue
                    visited.add((j, d))
                    if j < len(ins) and ins[j].label is not None:
                        for b in preds.get(j, []):
                            out.append((ins[b], d))
                            if d + 1 < budget: stack.append((b, d + 1))
                    k = j - 1
                    if k < 0: continue
                    x = ins[k]
                    if x.kind == 'branch' and x.mn == 's_branch': continue
                    if x.mn == 's_endpgm': continue
                    if x.kind not in ('label', 'dir'):
                        out.append((x, d))
                    nd = d + x.states()
                    if nd < budget: stack.append((k, nd))
                return out
            for i, c in enumerate(ins):
                if c.kind in ('label', 'dir', 'nop', 'misc', 'branch'): continue
                worst = 0
                for p, d in back_paths(i, 13, None):
                    n = need(p, c)
                    if n > d: worst = max(worst, n - d)
                if worst:
                    self.ins.insert(i, Ins(f's_nop {worst - 1}'))
                    nins += 1
                    changed = True
                    break
        return nins

    def text(self):
        out = []
        for x in self.ins:
            out.append(x.text if (x.label or x.kind == 'dir') else '    ' + x.text)
        return '\n'.join(out)
```

```python
import sys
sys.path.insert(0, "dev")
import gen as G
from gen import *

MF = "v_mfma_f32_16x16x32_bf16"

K2_KC, K2_CSTR, K2_CH = 0, 4160, 16640
K2_U, K2_USTR = 33280, 4608
K2_RED = K2_U + 2 * K2_USTR
K2_LDS = K2_RED + 16384

def pk(a, op, d, x, y, z=None, mods=""):
    if z is None:
        a(f"v_pk_{op}_f32 v[{d}:{d+1}], v[{x}:{x+1}], v[{y}:{y+1}] {mods}")
    else:
        a(f"v_pk_{op}_f32 v[{d}:{d+1}], v[{x}:{x+1}], v[{y}:{y+1}], v[{z}:{z+1}] {mods}")
BC = "op_sel_hi:[1,0]"

def gen_k2(a):
    a("s_load_dwordx4 s[4:7], s[0:1], %d" % KA['ssmk'])
    a("s_load_dwordx2 s[12:13], s[0:1], %d" % KA['ws'])
    wave_id(a)
    a("s_cmp_ge_u32 s2, 224\ns_cbranch_scc1 L_k2_end")
    a(f"s_lshr_b32 s40, s{S_WAVE}, 1")
    a(f"s_and_b32 s41, s{S_WAVE}, 1")
    a("s_lshl_b32 s42, s2, 1\ns_add_u32 s42, s42, s40")
    a("s_lshl_b32 s43, s42, 12")
    a("v_and_b32 v1, 63, v0")
    a("v_and_b32 v2, 15, v0")
    a("v_bfe_u32 v3, v0, 4, 2")
    a("s_waitcnt lgkmcnt(0)")
    SKF, SKV, SQT, SST, SMOD, SD, SX = 16, 20, 24, 28, 32, 36, 44
    a(f"s_add_u32 s{SKF}, s4, s43\ns_addc_u32 s{SKF+1}, s5, 0\ns_mov_b32 s{SKF+2}, 4096\ns_mov_b32 s{SKF+3}, 0x20000")
    srd(a, SKV, 12, SZ_T, WS_KVT); srd(a, SQT, 12, SZ_T, WS_QT); srd(a, SST, 12, 16384, WS_MU)
    srd(a, SMOD, 12, 6 * D * 4, WS_MOD); srd(a, SD, 6, D * 2); srd(a, SX, 12, SZ_T, WS_X1T)
    a("s_lshl_b32 s48, s41, 11")
    a("v_lshlrev_b32 v4, 4, v1")
    a("v_add_u32 v4, s48, v4")
    a("v_sub_u32 v5, 4080, v4")
    a("v_sub_u32 v6, 3056, v4")
    a("v_subrev_u32 v7, 8, v5\nv_subrev_u32 v8, 8, v6")
    XS = 16
    a(f"buffer_load_dwordx4 v[16:19], v5, s[{SKF}:{SKF+3}], 0 offen")
    a(f"buffer_load_dwordx2 v[20:21], v7, s[{SKF}:{SKF+3}], 0 offen")
    a(f"buffer_load_dwordx4 v[24:27], v6, s[{SKF}:{SKF+3}], 0 offen")
    a(f"buffer_load_dwordx2 v[22:23], v8, s[{SKF}:{SKF+3}], 0 offen")
    a(f"s_mul_i32 s49, s40, {K2_USTR}")
    a(f"s_add_u32 s49, s49, {K2_U}")
    a("s_lshl_b32 s50, s41, 11")
    a("s_add_u32 s51, s49, s50\ns_add_u32 s51, s51, 480")
    a("s_add_u32 s52, s43, s50")
    a("v_lshlrev_b32 v9, 4, v1")
    a("s_mov_b32 m0, s51")
    a(f"buffer_load_dwordx4 v9, s[{SKV}:{SKV+3}], s52 offen lds")
    a("s_add_u32 m0, s51, 1024\ns_add_u32 s52, s52, 1024")
    a(f"buffer_load_dwordx4 v9, s[{SKV}:{SKV+3}], s52 offen lds")
    a("v_lshlrev_b32 v10, 5, v2\nv_lshl_add_u32 v10, v3, 3, v10")
    a("s_add_u32 s53, s43, s50")
    EQ, EMU, ERI = 128, 136, 152
    for t in range(4):
        a(f"buffer_load_dwordx2 v[{EQ+2*t}:{EQ+2*t+1}], v10, s[{SQT}:{SQT+3}], s53 offen offset:{512*t}")
    a("v_lshlrev_b32 v11, 1, v10")
    a("s_lshl_b32 s54, s41, 12\ns_add_u32 s55, s54, 0x2000")
    for t in range(4):
        a(f"buffer_load_dwordx4 v[{EMU+4*t}:{EMU+4*t+3}], v11, s[{SST}:{SST+3}], s54 offen offset:{1024*t}")
    for t in range(4):
        a(f"buffer_load_dwordx4 v[{ERI+4*t}:{ERI+4*t+3}], v11, s[{SST}:{SST+3}], s55 offen offset:{1024*t}")
    ESA, ECA, EGA, ED = 168, 170, 172, 174
    a("s_lshl_b32 s56, s42, 2\nv_mov_b32 v12, s56")
    a(f"buffer_load_dword v{ESA}, v12, s[{SMOD}:{SMOD+3}], 0 offen")
    a(f"buffer_load_dword v{ECA}, v12, s[{SMOD}:{SMOD+3}], 0 offen offset:{448*4}")
    a(f"buffer_load_dword v{EGA}, v12, s[{SMOD}:{SMOD+3}], 0 offen offset:{2*448*4}")
    a("v_lshrrev_b32 v13, 1, v12")
    a(f"buffer_load_ushort v{ED}, v13, s[{SD}:{SD+3}], 0 offen")
    a("v_mov_b32 v28, 0\nv_mov_b32 v29, 0\nv_mov_b32 v30, 0\nv_mov_b32 v31, 0")
    a(f"s_mul_i32 s57, s40, {K2_CH}")
    a("v_lshrrev_b32 v14, 2, v1")
    a(f"v_mul_u32_u24 v14, {K2_CSTR}, v14")
    a("v_and_b32 v15, 3, v1\nv_lshl_add_u32 v14, v15, 4, v14")
    a("s_add_u32 s58, s57, 4096\nv_add_u32 v14, s58, v14")
    a("v_add_u32 v15, s49, v9")
    a("s_cmp_eq_u32 s41, 0")
    lz = a.newlabel("L_k2_nz")
    a(f"s_cbranch_scc0 {lz}")
    a("s_mov_b64 exec, 0xffff\nds_write_b128 v14, v[28:31]")
    a("s_mov_b64 exec, 0x3fffffff\nds_write_b128 v15, v[28:31]")
    a("s_mov_b64 exec, -1")
    a.label(lz)
    a("s_movk_i32 s59, 0x0\ns_mov_b32 s60, 0xffff")
    a("v_add_u32 v32, s57, v4")
    a("s_waitcnt vmcnt(18)")
    for i, (x4, x2) in enumerate(((16, 20), (24, 22))):
        Sx = {-2: x2, -1: x2 + 1, 0: x4, 1: x4 + 1, 2: x4 + 2, 3: x4 + 3}
        T = 36 + 16 * i
        for e in range(4):
            a(f"v_alignbit_b32 v{T+e}, v{Sx[3-e]}, v{Sx[3-e]}, 16")
            a(f"v_bfi_b32 v{T+4+e}, s60, v{Sx[3-e]}, v{Sx[2-e]}")
            a(f"v_alignbit_b32 v{T+8+e}, v{Sx[2-e]}, v{Sx[2-e]}, 16")
            a(f"v_bfi_b32 v{T+12+e}, s60, v{Sx[2-e]}, v{Sx[1-e]}")
        for c in range(4):
            a(f"ds_write_b128 v32, v[{T+4*c}:{T+4*c+3}] offset:{c*K2_CSTR + 1024*i}")
    a("v_and_b32 v33, 3, v2\nv_sub_u32 v33, 3, v33")
    a(f"v_mul_u32_u24 v33, {K2_CSTR}, v33")
    a("v_lshrrev_b32 v34, 2, v2\nv_lshlrev_b32 v34, 3, v34")
    a("v_sub_u32 v33, v33, v34")
    a("v_lshl_add_u32 v33, v3, 4, v33")
    a("s_lshl_b32 s61, s41, 8")
    a(f"s_add_u32 s62, s57, {4056 - 64*3 - 512*7}\ns_sub_u32 s62, s62, s61")
    a("v_add_u32 v33, s62, v33")
    a("v_lshlrev_b32 v34, 5, v2\nv_lshl_add_u32 v34, v3, 4, v34")
    a(f"s_add_u32 s63, s49, {448 - 64*3}\ns_sub_u32 s63, s63, s61")
    a("v_add_u32 v34, s63, v34")
    a("s_waitcnt vmcnt(16) lgkmcnt(0)\ns_barrier")
    A0, A1, B0, B1, ACC = 0, 32, 64, 96, 96
    def frag_loads(rp, st):
        L = []
        ab = 0 if st == 0 else 32
        bb = 64 if st == 0 else 96
        for x in range(8):
            L.append(f"ds_read_b128 a[{bb+4*x}:{bb+4*x+3}], v34 offset:{512*x + 64*(3-rp)}")
            o = 64 * (3 - rp) + 512 * (7 - x)
            L.append(f"ds_read_b64 a[{ab+4*x}:{ab+4*x+1}], v33 offset:{o}")
            L.append(f"ds_read_b64 a[{ab+4*x+2}:{ab+4*x+3}], v33 offset:{o+8}")
        return L
    order = []
    for x in range(8):
        for i in range(x + 1):
            for w in range(x + 1):
                if max(i, w) == x and i + w <= 7: order.append((i, w))
    assert len(order) == 36
    for l in frag_loads(0, 0): a(l)
    started = set()
    for rp in range(4):
        st = rp & 1
        a("s_waitcnt lgkmcnt(0)")
        nxt = frag_loads(rp + 1, st ^ 1) if rp < 3 else []
        ab = 0 if st == 0 else 32
        bb = 64 if st == 0 else 96
        for n, (i, w) in enumerate(order):
            tn = i + w
            acc = f"v[{ACC+4*tn}:{ACC+4*tn+3}]"
            c = acc if tn in started else "0"
            started.add(tn)
            a(f"{MF} {acc}, a[{ab+4*i}:{ab+4*i+3}], a[{bb+4*w}:{bb+4*w+3}], {c}")
            if n < len(nxt): a(nxt[n])
    a(f"s_lshl_b32 s64, s{S_WAVE}, 12\ns_add_u32 s64, s64, {K2_RED}")
    a("v_add_u32 v35, s64, v9")
    a(f"s_xor_b32 s65, s{S_WAVE}, 1\ns_lshl_b32 s65, s65, 12\ns_add_u32 s65, s65, {K2_RED}")
    a("v_add_u32 v36, s65, v9")
    lh1 = a.newlabel("L_k2_h1"); lj = a.newlabel("L_k2_join")
    a(f"s_cmp_eq_u32 s41, 1\ns_cbranch_scc1 {lh1}")
    for t in range(4):
        a(f"ds_write_b128 v35, v[{ACC+16+4*t}:{ACC+16+4*t+3}] offset:{1024*t}")
    a(f"s_branch {lj}")
    a.label(lh1)
    for t in range(4):
        a(f"ds_write_b128 v35, v[{ACC+4*t}:{ACC+4*t+3}] offset:{1024*t}")
    for e in range(16):
        a(f"v_mov_b32 v{ACC+e}, v{ACC+16+e}")
    a.label(lj)
    a(f"s_add_u32 s66, s49, s50\ns_add_u32 s66, s66, 480")
    a("v_add_u32 v37, s66, v10")
    EU = 40
    for t in range(4):
        a(f"ds_read_b64 v[{EU+2*t}:{EU+2*t+1}], v37 offset:{512*t}")
    a("s_waitcnt lgkmcnt(0)\ns_barrier")
    PR = 48
    for t in range(4):
        a(f"ds_read_b128 v[{PR+4*t}:{PR+4*t+3}], v36 offset:{1024*t}")
    a("s_waitcnt vmcnt(0)")
    a(f"v_add_f32 v{ECA}, 1.0, v{ECA}")
    if cfg.mim_h1:
        a(f"v_cvt_pk_bf16_f32 v64, v{ECA}, v{ECA}\nv_and_b32 v{ECA}, s{S_MASK}, v64")
    a(f"v_lshlrev_b32 v{ED}, 16, v{ED}")
    a("s_waitcnt lgkmcnt(0)")
    for e in range(0, 16, 2):
        pk(a, "add", ACC + e, ACC + e, PR + e)
    X, Y, T, O = 64, 66, 68, 72
    for t in range(4):
        for hp in range(2):
            e = 4 * t + 2 * hp
            q = 70
            unpack(a, q, q + 1, EQ + 2 * t + hp)
            mu = EMU + 4 * t + 2 * hp; ri = ERI + 4 * t + 2 * hp
            pk(a, "add", X, q, mu, mods="neg_lo:[0,1] neg_hi:[0,1]")
            if cfg.mim_h1: rnd2(a, X, X + 1, T)
            pk(a, "mul", X, X, ri)
            if cfg.mim_h1:
                rnd2(a, X, X + 1, T)
                pk(a, "mul", X, X, ECA, mods=BC)
                rnd2(a, X, X + 1, T)
                pk(a, "add", X, X, ESA, mods=BC)
                rnd2(a, X, X + 1, T)
            else:
                pk(a, "fma", X, X, ECA, ESA, mods="op_sel_hi:[1,0,0]")
            unpack(a, Y, Y + 1, EU + 2 * t + hp)
            y = ACC + e
            if cfg.mim_y:
                pk(a, "mul", Y, Y, ED, mods=BC)
                rnd2(a, Y, Y + 1, T)
                rnd2(a, y, y + 1, T + 1)
                pk(a, "add", Y, Y, y)
                rnd2(a, Y, Y + 1, T)
                pk(a, "mul", X, X, Y)
                rnd2(a, X, X + 1, T)
                pk(a, "mul", X, X, EGA, mods=BC)
                rnd2(a, X, X + 1, T)
                pk(a, "add", X, X, q)
            else:
                pk(a, "fma", Y, Y, ED, y, mods="op_sel_hi:[1,0,1]")
                pk(a, "mul", X, X, Y)
                pk(a, "fma", X, X, EGA, q, mods="op_sel_hi:[1,0,1]")
            a(f"v_cvt_pk_bf16_f32 v{O+2*t+hp}, v{X}, v{X+1}")
        a(f"buffer_store_dwordx2 v[{O+2*t}:{O+2*t+1}], v10, s[{SX}:{SX+3}], s53 offen offset:{512*t}")
    a.label("L_k2_end")

def kernels():
    ks = [("k2_conv_kernel", gen_k2, 224, K2_LDS, 384)]
    try:
        import gen3
        ks += gen3.kernels()
    except ImportError:
        pass
    return ks
```

```python
import sys
sys.path.insert(0, "dev")
import gen as G
from gen import *
from gen2 import pk, BC, MF

def tile_ids(a):
    a("s_and_b32 s42, s2, 7\ns_lshr_b32 s43, s2, 3")
    divmod7(a, 44, 41, 43)
    a("s_lshl_b32 s40, s42, 2\ns_add_u32 s40, s40, s44")

def lane_consts(a):
    a("v_and_b32 v1, 63, v0")
    a("v_and_b32 v2, 15, v0")
    a("v_bfe_u32 v3, v0, 4, 2")
    a("v_lshrrev_b32 v4, 3, v1")
    a("v_and_b32 v5, 7, v1")
    a("v_lshlrev_b32 v6, 1, v3")
    a("v_xor_b32 v5, v5, v6")
    a("v_lshlrev_b32 v5, 4, v5")

def tr_addr(a, dst, sel, tmp):
    a(f"v_lshrrev_b32 v{tmp}, 2, v2")
    a(f"v_lshl_add_u32 v{dst}, v3, 2, v{tmp}")
    a(f"v_lshrrev_b32 v{tmp+1}, 1, v{dst}")
    a(f"v_and_b32 v{tmp+1}, 3, v{tmp+1}")
    a(f"v_xor_b32 v{tmp+1}, {sel}, v{tmp+1}")
    a(f"v_lshlrev_b32 v{tmp+1}, 5, v{tmp+1}")
    a(f"v_lshlrev_b32 v{dst}, 7, v{dst}")
    a(f"v_add_u32 v{dst}, v{dst}, v{tmp+1}")
    a(f"v_and_b32 v{tmp}, 3, v2")
    a(f"v_lshl_add_u32 v{dst}, v{tmp}, 3, v{dst}")

K3_XT, K3_TAB, K3_RING, K3_NSLOT = 0, 57344, 60928, 6
K3_LDS = K3_RING + 4 * K3_NSLOT * 4096

def gen_k3(a):
    a("s_load_dwordx2 s[4:5], s[0:1], %d" % KA['w1'])
    a("s_load_dwordx2 s[12:13], s[0:1], %d" % KA['ws'])
    wave_id(a)
    a("s_cmp_ge_u32 s2, 224\ns_cbranch_scc1 L_k3_end")
    tile_ids(a)
    lane_consts(a)
    a("s_waitcnt lgkmcnt(0)")
    SX, SW, SMOD, SH = 16, 20, 24, 28
    srd(a, SX, 12, SZ_T, WS_X1T); srd(a, SW, 4, D * F * 2); srd(a, SMOD, 12, 6 * D * 4, WS_MOD); srd(a, SH, 12, SZ_H, WS_H)
    a("v_lshlrev_b32 v7, 4, v0")
    a(f"v_add_u32 v8, {3*448*4}, v7")
    a(f"buffer_load_dwordx4 v[16:19], v8, s[{SMOD}:{SMOD+3}], 0 offen")
    a(f"buffer_load_dwordx4 v[20:23], v8, s[{SMOD}:{SMOD+3}], 0 offen offset:{448*4}")
    a("s_lshl_b32 s45, s40, 7")
    a("v_lshlrev_b32 v9, 12, v4\nv_add_u32 v9, v9, v5\nv_add_u32 v9, s45, v9")
    a(f"s_mul_i32 s46, s{S_WAVE}, 14")
    a("s_lshl_b32 s47, s46, 15\ns_lshl_b32 s48, s46, 10")
    for n in range(14):
        a(f"s_add_u32 m0, s48, {K3_XT + 1024*n}")
        a(f"s_add_u32 s49, s47, {32768*n}")
        a(f"buffer_load_dwordx4 v9, s[{SX}:{SX+3}], s49 offen lds")
    a("v_mul_u32_u24 v10, 3584, v4\nv_add_u32 v10, v10, v5")
    a(f"s_lshl_b32 s52, s41, 9\ns_lshl_b32 s53, s{S_WAVE}, 7\ns_add_u32 s52, s52, s53")
    a("v_add_u32 v10, s52, v10")
    a(f"s_mul_i32 s54, s{S_WAVE}, {K3_NSLOT*4096}\ns_add_u32 s54, s54, {K3_RING}")
    def dma_w1(ks):
        L = []
        for qq in range(4):
            L.append(f"s_add_u32 m0, s54, {(ks % K3_NSLOT)*4096 + 1024*qq}\ns_mov_b32 s55, {(32*ks + 8*qq)*3584}\n"
                     f"buffer_load_dwordx4 v10, s[{SW}:{SW+3}], s55 offen lds")
        return L
    for ks in range(K3_NSLOT):
        for l in dma_w1(ks): a(l)
    a(f"s_waitcnt vmcnt({14 + 4*K3_NSLOT})")
    for e in range(4):
        a(f"v_add_f32 v{20+e}, 1.0, v{20+e}")
    if cfg.mim_ln2:
        rnd2(a, 20, 21, 24); rnd2(a, 22, 23, 24)
    a("v_cmp_gt_u32 vcc, 112, v0\ns_and_saveexec_b64 s[50:51], vcc")
    a(f"ds_write_b128 v7, v[20:23] offset:{K3_TAB}")
    a(f"ds_write_b128 v7, v[16:19] offset:{K3_TAB + 1792}")
    a("s_mov_b64 exec, s[50:51]")
    tr_addr(a, 11, f"s{S_WAVE}", 24)
    for ft in range(4):
        tr_addr(a, 12 + ft, str(ft), 24)
        a(f"v_add_u32 v{12+ft}, s54, v{12+ft}")
    a(f"s_waitcnt vmcnt({4*K3_NSLOT}) lgkmcnt(0)\ns_barrier")
    XR = 32
    for ks in range(14):
        a(f"ds_read_b64_tr_b16 v[{XR+4*ks}:{XR+4*ks+1}], v11 offset:{4096*ks}")
        a(f"ds_read_b64_tr_b16 v[{XR+4*ks+2}:{XR+4*ks+3}], v11 offset:{4096*ks+2048}")
    a("v_mov_b32 v16, 0x3f803f80\nv_mov_b32 v17, v16\nv_mov_b32 v18, v16\nv_mov_b32 v19, v16")
    a("v_and_b32 v24, 3, v0")
    a("v_cmp_eq_u32 s[56:57], 1, v24\nv_cmp_eq_u32 s[58:59], 2, v24\nv_cmp_eq_u32 s[60:61], 3, v24")
    a("v_lshrrev_b32 v24, 2, v2\nv_lshl_add_u32 v24, v24, 4, v2\nv_lshlrev_b32 v24, 2, v24")
    a("s_waitcnt lgkmcnt(0)")
    a("s_barrier")
    SU, GR = 88, 92
    for ks in range(14):
        r = XR + 4 * ks
        c1 = "0" if ks == 0 else f"v[{SU}:{SU+3}]"
        c2 = "0" if ks == 0 else f"v[{GR}:{GR+3}]"
        a(f"{MF} v[{SU}:{SU+3}], v[16:19], v[{r}:{r+3}], {c1}")
        a(f"{MF} v[{GR}:{GR+3}], v[{r}:{r+3}], v[{r}:{r+3}], {c2}")
    a(f"v_cndmask_b32 v25, v{GR}, v{GR+1}, s[56:57]")
    a(f"v_cndmask_b32 v25, v25, v{GR+2}, s[58:59]")
    a(f"v_cndmask_b32 v25, v25, v{GR+3}, s[60:61]")
    a("ds_bpermute_b32 v27, v24, v25")
    a(f"v_mov_b32 v26, v{SU}")
    a("s_waitcnt lgkmcnt(0)")
    ln_scalars(a, 26, 27, 28, 29)
    a("v_mov_b32 v28, v27")
    MU, RI = 26, 28
    a("v_lshlrev_b32 v24, 4, v3")
    a(f"s_mul_i32 s62, s{S_WAVE}, {14*1024}")
    a("v_lshlrev_b32 v25, 4, v1\nv_add_u32 v25, s62, v25")
    TB = [96, 112]
    def tab_reads(ks):
        t = TB[ks & 1]
        o = K3_TAB + 128 * ks
        return [f"ds_read_b128 v[{t}:{t+3}], v24 offset:{o}", f"ds_read_b128 v[{t+4}:{t+7}], v24 offset:{o+64}",
                f"ds_read_b128 v[{t+8}:{t+11}], v24 offset:{o+1792}", f"ds_read_b128 v[{t+12}:{t+15}], v24 offset:{o+1792+64}"]
    for l in tab_reads(0): a(l)
    X, T, O = 128, 130, 132
    for ks in range(14):
        if ks < 13:
            for l in tab_reads(ks + 1): a(l)
            a("s_waitcnt lgkmcnt(4)" if ks == 0 else "s_waitcnt lgkmcnt(5)")
        else:
            a("s_waitcnt lgkmcnt(1)")
        t = TB[ks & 1]
        for e in range(4):
            unpack(a, X, X + 1, XR + 4 * ks + e)
            pk(a, "add", X, X, MU, mods="op_sel_hi:[1,0] neg_lo:[0,1] neg_hi:[0,1]")
            if cfg.mim_ln2:
                rnd2(a, X, X + 1, T)
                pk(a, "mul", X, X, RI, mods=BC)
                rnd2(a, X, X + 1, T)
                pk(a, "mul", X, X, t + 2 * e)
                rnd2(a, X, X + 1, T)
                pk(a, "add", X, X, t + 8 + 2 * e)
            else:
                pk(a, "mul", X, X, RI, mods=BC)
                pk(a, "fma", X, X, t + 2 * e, t + 8 + 2 * e)
            a(f"v_cvt_pk_bf16_f32 v{O+e}, v{X}, v{X+1}")
        a(f"ds_write_b128 v25, v[{O}:{O+3}] offset:{1024*ks}")
    a("s_waitcnt lgkmcnt(0)\ns_barrier")
    a("v_lshlrev_b32 v24, 4, v1")
    ACC = 160
    AF = [0, 16]; BF = [32, 48]
    def reads(ks):
        st = ks & 1; L = []
        so = (ks % K3_NSLOT) * 4096
        for x in range(4):
            L.append(f"ds_read_b128 a[{BF[st]+4*x}:{BF[st]+4*x+3}], v24 offset:{K3_XT + (x*14 + ks)*1024}")
            L.append(f"ds_read_b64_tr_b16 a[{AF[st]+4*x}:{AF[st]+4*x+1}], v{12+x} offset:{so}")
            L.append(f"ds_read_b64_tr_b16 a[{AF[st]+4*x+2}:{AF[st]+4*x+3}], v{12+x} offset:{so+2048}")
        return L
    a(f"s_waitcnt vmcnt({4*(K3_NSLOT-1)})")
    for l in reads(0): a(l)
    for ks in range(14):
        st = ks & 1
        a("s_waitcnt lgkmcnt(0)")
        extra = []
        if ks + K3_NSLOT < 14: extra += dma_w1(ks + K3_NSLOT)
        if ks + 1 < 14:
            last = min(ks + K3_NSLOT, 13)
            extra.append(f"s_waitcnt vmcnt({4*(last - (ks+1))})")
            extra += reads(ks + 1)
        n = 0
        for ft in range(4):
            for tt in range(4):
                acc = f"v[{ACC+4*(4*ft+tt)}:{ACC+4*(4*ft+tt)+3}]"
                c = "0" if ks == 0 else acc
                a(f"{MF} {acc}, a[{AF[st]+4*ft}:{AF[st]+4*ft+3}], a[{BF[st]+4*tt}:{BF[st]+4*tt+3}], {c}")
                for _ in range(2 if n < 2 else 1):
                    if extra: a(extra.pop(0))
                n += 1
        while extra: a(extra.pop(0))
    a(f"s_mov_b32 s64, 0x{f32bits(-1.4426950408889634):08x}\ns_mov_b32 s65, s64")
    a(f"s_mul_i32 s66, s40, 56\ns_lshl_b32 s67, s41, 3\ns_add_u32 s66, s66, s67\ns_lshl_b32 s67, s{S_WAVE}, 1\ns_add_u32 s66, s66, s67")
    a("s_lshl_b32 s66, s66, 12")
    X, E, T, O = 32, 34, 36, 40
    for kl in range(2):
        for tt in range(4):
            o = O + 4 * ((kl * 4 + tt) & 1)
            for e in range(4):
                src = ACC + 4 * (4 * (2 * kl + (e >> 1)) + tt) + 2 * (e & 1)
                if cfg.mim_h:
                    a(f"v_cvt_pk_bf16_f32 v{T}, v{src}, v{src+1}")
                    unpack(a, X, X + 1, T)
                    x = X
                else:
                    x = src
                a(f"v_pk_mul_f32 v[{E}:{E+1}], v[{x}:{x+1}], s[64:65]")
                a(f"v_exp_f32 v{E}, v{E}\nv_exp_f32 v{E+1}, v{E+1}")
                a(f"v_add_f32 v{E}, 1.0, v{E}\nv_add_f32 v{E+1}, 1.0, v{E+1}")
                a(f"v_rcp_f32 v{E}, v{E}\nv_rcp_f32 v{E+1}, v{E+1}")
                pk(a, "mul", E, E, x)
                a(f"v_cvt_pk_bf16_f32 v{o+e}, v{E}, v{E+1}")
            a(f"s_add_u32 s67, s66, {(kl*4 + tt)*1024}")
            a(f"buffer_store_dwordx4 v[{o}:{o+3}], v24, s[{SH}:{SH+3}], s67 offen")
    a.label("L_k3_end")

K4_RING, K4_XR = 0, 131072
K4_LDS = K4_XR + 8192
K4_DEPTH = 7

def gen_k4(a):
    a("s_load_dwordx2 s[4:5], s[0:1], %d" % KA['w2'])
    a("s_load_dwordx2 s[6:7], s[0:1], %d" % KA['out'])
    a("s_load_dwordx2 s[12:13], s[0:1], %d" % KA['ws'])
    wave_id(a)
    a("s_cmp_ge_u32 s2, 224\ns_cbranch_scc1 L_k4_end")
    tile_ids(a)
    lane_consts(a)
    a("s_waitcnt lgkmcnt(0)")
    SX, SW, SMOD, SH, SO = 16, 20, 24, 28, 32
    srd(a, SX, 12, SZ_T, WS_X1T); srd(a, SW, 4, D * F * 2); srd(a, SMOD, 12, 6 * D * 4, WS_MOD); srd(a, SH, 12, SZ_H, WS_H)
    srd(a, SO, 6, SZ_T)
    a(f"s_lshl_b32 s45, s41, 8\ns_add_u32 s45, s45, {5*448*4}")
    a("v_lshlrev_b32 v7, 5, v3\nv_add_u32 v7, s45, v7")
    GB = 16
    for ps in range(2):
        a(f"buffer_load_dwordx4 v[{GB+8*ps}:{GB+8*ps+3}], v7, s[{SMOD}:{SMOD+3}], 0 offen offset:{128*ps}")
        a(f"buffer_load_dwordx4 v[{GB+8*ps+4}:{GB+8*ps+7}], v7, s[{SMOD}:{SMOD+3}], 0 offen offset:{128*ps+16}")
    a("s_lshl_b32 s46, s40, 7")
    a("v_lshlrev_b32 v9, 12, v4\nv_add_u32 v9, v9, v5\nv_add_u32 v9, s46, v9")
    a(f"s_lshl_b32 s47, s41, 18\ns_lshl_b32 s48, s{S_WAVE}, 16\ns_add_u32 s47, s47, s48")
    a(f"s_lshl_b32 s48, s{S_WAVE}, 11\ns_add_u32 s48, s48, {K4_XR}")
    for n in range(2):
        a(f"s_add_u32 m0, s48, {1024*n}\ns_add_u32 s49, s47, {32768*n}")
        a(f"buffer_load_dwordx4 v9, s[{SX}:{SX+3}], s49 offen lds")
    a("v_mul_u32_u24 v10, 896, v4\nv_add_u32 v10, v10, v5")
    a("s_lshl_b32 s52, s41, 7\nv_add_u32 v10, s52, v10")
    a(f"s_lshl_b32 s54, s{S_WAVE}, 15")
    a(f"s_mul_i32 s56, s{S_WAVE}, {14*32*896}")
    a(f"s_mul_i32 s57, s40, 56\ns_mul_i32 s58, s{S_WAVE}, 14\ns_add_u32 s57, s57, s58\ns_lshl_b32 s57, s57, 12")
    a("v_lshlrev_b32 v11, 4, v1")
    def group(ks):
        L = []
        sl = ks % 8
        for qq in range(4):
            L.append(f"s_add_u32 m0, s54, {sl*4096 + 1024*qq}\ns_add_u32 s55, s56, {(32*ks + 8*qq)*896}\n"
                     f"buffer_load_dwordx4 v10, s[{SW}:{SW+3}], s55 offen lds")
        for tt in range(4):
            L.append(f"s_add_u32 s55, s57, {ks*4096 + 1024*tt}\n"
                     f"buffer_load_dwordx4 a[{16*sl+4*tt}:{16*sl+4*tt+3}], v11, s[{SH}:{SH+3}], s55 offen")
        return L
    for ks in range(K4_DEPTH):
        for l in group(ks): a(l)
    for nt in range(4):
        tr_addr(a, 12 + nt, str(nt), 32)
        a(f"v_add_u32 v{12+nt}, s54, v{12+nt}")
    ACC = 64
    AF = [128, 144]
    def reads(ks):
        st = ks & 1; L = []
        so = (ks % 8) * 4096
        for x in range(4):
            L.append(f"ds_read_b64_tr_b16 a[{AF[st]+4*x}:{AF[st]+4*x+1}], v{12+x} offset:{so}")
            L.append(f"ds_read_b64_tr_b16 a[{AF[st]+4*x+2}:{AF[st]+4*x+3}], v{12+x} offset:{so+2048}")
        return L
    a(f"s_waitcnt vmcnt({8*(K4_DEPTH-1)})")
    for l in reads(0): a(l)
    for ks in range(14):
        st = ks & 1; sl = ks % 8
        a("s_waitcnt lgkmcnt(0)")
        extra = []
        if ks + K4_DEPTH < 14: extra += group(ks + K4_DEPTH)
        if ks + 1 < 14:
            last = min(ks + K4_DEPTH, 13)
            extra.append(f"s_waitcnt vmcnt({8*(last - (ks+1))})")
            extra += reads(ks + 1)
        n = 0
        for nt in range(4):
            for tt in range(4):
                acc = f"v[{ACC+4*(4*nt+tt)}:{ACC+4*(4*nt+tt)+3}]"
                c = "0" if ks == 0 else acc
                a(f"{MF} {acc}, a[{AF[st]+4*nt}:{AF[st]+4*nt+3}], a[{16*sl+4*tt}:{16*sl+4*tt+3}], {c}")
                for _ in range(2 if n < 4 else 1):
                    if extra: a(extra.pop(0))
                n += 1
        while extra: a(extra.pop(0))
    a("v_mul_u32_u24 v32, 272, v2\nv_lshl_add_u32 v33, v3, 4, v32\nv_add_u32 v33, s54, v33")
    for nt in range(4):
        for tt in range(4):
            r = ACC + 4 * (4 * nt + tt)
            a(f"ds_write_b128 v33, v[{r}:{r+3}] offset:{tt*4352 + 64*nt}")
    a("v_lshrrev_b32 v34, 2, v2")
    a("v_lshl_add_u32 v35, v3, 3, v34")
    a("v_lshrrev_b32 v36, 1, v34")
    a(f"v_xor_b32 v36, s{S_WAVE}, v36")
    a("v_lshlrev_b32 v37, 5, v36")
    a("v_xor_b32 v38, 64, v37")
    a("v_lshlrev_b32 v35, 7, v35")
    a("v_and_b32 v34, 3, v2\nv_lshl_add_u32 v35, v34, 3, v35")
    a(f"v_add_u32 v35, {K4_XR}, v35")
    a("v_add_u32 v37, v37, v35\nv_add_u32 v38, v38, v35")
    a(f"s_mul_i32 s59, s{S_WAVE}, {16*272}")
    a("v_lshl_add_u32 v39, v3, 5, v32\nv_add_u32 v39, s59, v39")
    a(f"s_lshl_b32 s60, s40, 6\ns_lshl_b32 s61, s{S_WAVE}, 4\ns_add_u32 s60, s60, s61\ns_mul_i32 s60, s60, 896")
    a("s_lshl_b32 s61, s41, 7\ns_add_u32 s60, s60, s61")
    a("v_mul_u32_u24 v40, 896, v2\nv_lshl_add_u32 v40, v3, 4, v40\nv_add_u32 v40, s60, v40")
    a("s_waitcnt vmcnt(0) lgkmcnt(0)\ns_barrier")
    P = 64
    XR = 44
    for ps in range(2):
        a(f"ds_read_b64_tr_b16 v[{XR+4*ps}:{XR+4*ps+1}], v37 offset:{4096*ps}")
        a(f"ds_read_b64_tr_b16 v[{XR+4*ps+2}:{XR+4*ps+3}], v38 offset:{4096*ps + 512}")
    a("v_add_u32 v41, 0x10000, v39")
    for ps in range(2):
        for w in range(4):
            for hh in range(2):
                r = P + 32 * ps + 8 * w + 4 * hh
                a(f"ds_read_b128 v[{r}:{r+3}], v{39 if w < 2 else 41} offset:{(w & 1)*32768 + 128*ps + 16*hh}")
    a("s_waitcnt lgkmcnt(0)")
    X, T = 52, 54
    for ps in range(2):
        b = P + 32 * ps
        for e in range(4):
            x = b + 2 * e
            pk(a, "add", x, x, x + 8)
            pk(a, "add", x + 16, x + 16, x + 24)
            pk(a, "add", x, x, x + 16)
            if cfg.mim_o: rnd2(a, x, x + 1, T)
            unpack(a, X, X + 1, XR + 4 * ps + e)
            if cfg.mim_o:
                pk(a, "mul", x, x, GB + 8 * ps + 2 * e)
                rnd2(a, x, x + 1, T)
                pk(a, "add", x, x, X)
            else:
                pk(a, "fma", x, x, GB + 8 * ps + 2 * e, X)
            a(f"v_cvt_pk_bf16_f32 v{56+4*ps+e}, v{x}, v{x+1}")
        a(f"buffer_store_dwordx4 v[{56+4*ps}:{56+4*ps+3}], v40, s[{SO}:{SO+3}], 0 offen offset:{64*ps}")
    a.label("L_k4_end")

def kernels():
    return [("k3_gemm1_kernel", gen_k3, 224, K3_LDS, 320), ("k4_gemm2_kernel", gen_k4, 224, K4_LDS, 416)]
```

```python
import sys
sys.path.insert(0, "dev")
from asmgen import Asm

NAME = "adaLN_cond__ssm_conv_h3__dense_activation_silu__prompt"
S, D, F = 2048, 448, 1792
KA = dict(q=0, k=8, v=16, shift=24, ssmk=32, ssmD=40, bx=48, w1=56, w2=64, c=72, wmod=80, out=88, dbg=96, ws=104)
WS_KVT, WS_QT, WS_X1T = 0x000000, 0x200000, 0x400000
WS_MU, WS_RI, WS_MOD = 0x600000, 0x602000, 0x610000
WS_H = 0x800000
SZ_T = D * S * 2
SZ_H = S * F * 2

class Cfg:
    mim_ks = True
    mim_h1 = True
    mim_y = True
    mim_ln2 = True
    mim_h = True
    mim_o = True
cfg = Cfg()

def vr(b, n=1): return f"v{b}" if n == 1 else f"v[{b}:{b+n-1}]"
def ar(b, n=1): return f"a{b}" if n == 1 else f"a[{b}:{b+n-1}]"
def sr(b, n=1): return f"s{b}" if n == 1 else f"s[{b}:{b+n-1}]"

def srd(a, r, lo, size, add=0):
    if add == 0:
        a(f"s_mov_b32 s{r}, s{lo}\ns_mov_b32 s{r+1}, s{lo+1}")
    else:
        a(f"s_add_u32 s{r}, s{lo}, {add}\ns_addc_u32 s{r+1}, s{lo+1}, 0")
    a(f"s_mov_b32 s{r+2}, {size}\ns_mov_b32 s{r+3}, 0x20000")

S_MASK = 90
S_WAVE = 91

def unpack(a, dlo, dhi, src):
    a(f"v_lshlrev_b32 v{dlo}, 16, v{src}")
    a(f"v_and_b32 v{dhi}, s{S_MASK}, v{src}")

def rnd2(a, lo, hi, tmp):
    a(f"v_cvt_pk_bf16_f32 v{tmp}, v{lo}, v{hi}")
    unpack(a, lo, hi, tmp)

def wave_id(a):
    a(f"v_readfirstlane_b32 s{S_WAVE}, v0")
    a(f"s_mov_b32 s{S_MASK}, 0xffff0000")
    a(f"s_lshr_b32 s{S_WAVE}, s{S_WAVE}, 6")

def divmod7(a, q, r, x):
    a(f"s_mul_hi_u32 s{q}, s{x}, {(2**32 + 6)//7}")
    a(f"s_mul_i32 s{r}, s{q}, 7")
    a(f"s_sub_u32 s{r}, s{x}, s{r}")

def k1_main(a):
    SK, SV, SQ, SW, SOK, SOQ = 16, 20, 24, 28, 32, 36
    srd(a, SK, 6, SZ_T); srd(a, SV, 8, SZ_T); srd(a, SQ, 4, SZ_T); srd(a, SW, 10, D * 8)
    srd(a, SOK, 12, SZ_T, WS_KVT); srd(a, SOQ, 12, SZ_T, WS_QT)
    divmod7(a, 40, 41, 2)
    a("v_and_b32 v1, 31, v0")
    a("v_lshrrev_b32 v2, 5, v0")
    a("s_mul_i32 s42, s40, %d" % (64 * 896))
    a("s_lshl_b32 s43, s41, 7")
    a("s_add_u32 s42, s42, s43")
    a("v_mul_u32_u24 v3, %d, v2" % (8 * 896))
    a("v_lshl_add_u32 v3, v1, 2, v3")
    a("v_add_u32 v3, s42, v3")
    a("v_subrev_u32 v4, %d, v3" % (3 * 896))
    a("s_movk_i32 s44, %d" % (4 * 896))
    a("s_lshl_b32 s45, s41, 9")
    a("v_lshlrev_b32 v5, 4, v1")
    a("v_add_u32 v5, s45, v5")
    VW = 8
    VK = 12
    VV = 24
    VQ = 32
    a(f"buffer_load_dwordx4 v[{VW}:{VW+3}], v5, s[{SW}:{SW+3}], 0 offen")
    for i in range(3):
        a(f"buffer_load_dword v{VK+i}, v4, s[{SK}:{SK+3}], 0 offen offset:{896*i}")
    def rows(dst, srdreg):
        for i in range(8):
            so = "0" if i < 4 else "s44"
            a(f"buffer_load_dword v{dst+i}, v3, s[{srdreg}:{srdreg+3}], {so} offen offset:{896*(i%4)}")
    rows(VK + 3, SK); rows(VV, SV); rows(VQ, SQ)
    PITCH = 144
    a(f"v_mul_u32_u24 v6, {PITCH}, v1")
    a("v_lshl_add_u32 v6, v2, 4, v6")
    a("v_lshrrev_b32 v7, 3, v0")
    a("v_and_b32 v40, 1, v7")
    a("v_lshlrev_b32 v40, 5, v40")
    a("v_lshrrev_b32 v41, 1, v7")
    a("v_add_u32 v40, v40, v41")
    a(f"v_mul_u32_u24 v40, {PITCH}, v40")
    a("v_and_b32 v41, 7, v0")
    a("v_lshl_add_u32 v40, v41, 4, v40")
    a("s_lshl_b32 s46, s41, 18")
    a("s_lshl_b32 s47, s40, 7")
    a("s_add_u32 s46, s46, s47")
    a("v_lshlrev_b32 v7, 12, v7")
    a("v_lshl_add_u32 v7, v41, 4, v7")
    a("v_add_u32 v7, s46, v7")
    a("s_mov_b32 s47, %d" % (32 * 4096))
    W = 44
    a("s_waitcnt vmcnt(27)")
    a(f"v_lshlrev_b32 v{W+0}, 16, v{VW+0}\nv_and_b32 v{W+2}, s{S_MASK}, v{VW+0}")
    a(f"v_lshlrev_b32 v{W+4}, 16, v{VW+1}\nv_and_b32 v{W+6}, s{S_MASK}, v{VW+1}")
    a(f"v_lshlrev_b32 v{W+1}, 16, v{VW+2}\nv_and_b32 v{W+3}, s{S_MASK}, v{VW+2}")
    a(f"v_lshlrev_b32 v{W+5}, 16, v{VW+3}\nv_and_b32 v{W+7}, s{S_MASK}, v{VW+3}")
    KU = 52
    a("s_waitcnt vmcnt(16)")
    for i in range(11):
        unpack(a, KU + 2*i, KU + 2*i + 1, VK + i)
    R = 76
    P = 92
    T = 100
    a("s_waitcnt vmcnt(8)")
    for t in range(8):
        acc = P; pr = P + 2
        for n, j in enumerate((3, 2, 1, 0)):
            kr = KU + 2 * (t + 3 - j)
            if cfg.mim_ks:
                dst = acc if n == 0 else pr
                a(f"v_pk_mul_f32 v[{dst}:{dst+1}], v[{kr}:{kr+1}], v[{W+2*j}:{W+2*j+1}]")
                rnd2(a, dst, dst + 1, T)
                if n:
                    a(f"v_pk_add_f32 v[{acc}:{acc+1}], v[{acc}:{acc+1}], v[{pr}:{pr+1}]")
                    rnd2(a, acc, acc + 1, T + 1)
            else:
                if n == 0:
                    a(f"v_pk_mul_f32 v[{acc}:{acc+1}], v[{kr}:{kr+1}], v[{W+2*j}:{W+2*j+1}]")
                else:
                    a(f"v_pk_fma_f32 v[{acc}:{acc+1}], v[{kr}:{kr+1}], v[{W+2*j}:{W+2*j+1}], v[{acc}:{acc+1}]")
        unpack(a, pr, pr + 1, VV + t)
        a(f"v_pk_mul_f32 v[{R+2*t}:{R+2*t+1}], v[{acc}:{acc+1}], v[{pr}:{pr+1}]")
    for u in range(4):
        a(f"v_cvt_pk_bf16_f32 v{92+u}, v{R+4*u}, v{R+4*u+2}")
        a(f"v_cvt_pk_bf16_f32 v{96+u}, v{R+4*u+1}, v{R+4*u+3}")
    a(f"ds_write_b128 v6, v[92:95]")
    a(f"ds_write_b128 v6, v[96:99] offset:{32*PITCH}")
    a("s_mov_b32 s48, 0x05040100\ns_mov_b32 s49, 0x07060302")
    a("s_waitcnt vmcnt(0)")
    for u in range(4):
        a(f"v_perm_b32 v{104+u}, v{VQ+2*u+1}, v{VQ+2*u}, s48")
        a(f"v_perm_b32 v{108+u}, v{VQ+2*u+1}, v{VQ+2*u}, s49")
    QO = 64 * PITCH
    a(f"ds_write_b128 v6, v[104:107] offset:{QO}")
    a(f"ds_write_b128 v6, v[108:111] offset:{QO + 32*PITCH}")
    a("s_waitcnt lgkmcnt(0)\ns_barrier")
    a(f"ds_read_b128 v[112:115], v40")
    a(f"ds_read_b128 v[116:119], v40 offset:{16*PITCH}")
    a(f"ds_read_b128 v[120:123], v40 offset:{QO}")
    a(f"ds_read_b128 v[124:127], v40 offset:{QO + 16*PITCH}")
    a("s_waitcnt lgkmcnt(3)")
    a(f"buffer_store_dwordx4 v[112:115], v7, s[{SOK}:{SOK+3}], 0 offen")
    a("s_waitcnt lgkmcnt(2)")
    a(f"buffer_store_dwordx4 v[116:119], v7, s[{SOK}:{SOK+3}], s47 offen")
    a("s_waitcnt lgkmcnt(1)")
    a(f"buffer_store_dwordx4 v[120:123], v7, s[{SOQ}:{SOQ+3}], 0 offen")
    a("s_waitcnt lgkmcnt(0)")
    a(f"buffer_store_dwordx4 v[124:127], v7, s[{SOQ}:{SOQ+3}], s47 offen")

def k1_stats(a, first_id):
    SQ, SO = 16, 20
    srd(a, SQ, 4, SZ_T); srd(a, SO, 12, 16384, WS_MU)
    a(f"s_sub_u32 s40, s2, {first_id}")
    a(f"s_lshl_b32 s40, s40, 2\ns_add_u32 s40, s40, s{S_WAVE}")
    a("v_and_b32 v1, 15, v0")
    a("v_bfe_u32 v2, v0, 4, 2")
    a("v_mul_u32_u24 v3, 896, v1")
    a("v_lshl_add_u32 v3, v2, 4, v3")
    X = 16
    for n in range(3):
        a(f"s_add_u32 s41, s40, {44*n}")
        a(f"s_mul_i32 s41, s41, {16*896}")
        a(f"v_add_u32 v{10+n}, s41, v3")
        for ks in range(14):
            r = X + (n * 14 + ks) * 4
            a(f"buffer_load_dwordx4 v[{r}:{r+3}], v{10+n}, s[{SQ}:{SQ+3}], 0 offen offset:{64*ks}")
    a("v_mov_b32 v4, 0x3f803f80\nv_mov_b32 v5, v4\nv_mov_b32 v6, v4\nv_mov_b32 v7, v4")
    a("v_and_b32 v8, 3, v0")
    a("v_lshrrev_b32 v9, 2, v1")
    a("v_cmp_eq_u32 s[50:51], v9, v2")
    a("v_cmp_eq_u32 s[52:53], 1, v8\nv_cmp_eq_u32 s[54:55], 2, v8\nv_cmp_eq_u32 s[56:57], 3, v8")
    ACC = 184
    for n in range(3):
        a(f"s_waitcnt vmcnt({28 - 14*n})")
        s0, g0 = ACC, ACC + 4
        for ks in range(14):
            r = X + (n * 14 + ks) * 4
            c1 = "0" if ks == 0 else f"v[{s0}:{s0+3}]"
            c2 = "0" if ks == 0 else f"v[{g0}:{g0+3}]"
            a(f"v_mfma_f32_16x16x32_bf16 v[{s0}:{s0+3}], v[{r}:{r+3}], v[4:7], {c1}")
            a(f"v_mfma_f32_16x16x32_bf16 v[{g0}:{g0+3}], v[{r}:{r+3}], v[{r}:{r+3}], {c2}")
        for (src, dst) in ((s0, 192), (g0, 193)):
            a(f"v_cndmask_b32 v{dst}, v{src}, v{src+1}, s[52:53]")
            a(f"v_cndmask_b32 v{dst}, v{dst}, v{src+2}, s[54:55]")
            a(f"v_cndmask_b32 v{dst}, v{dst}, v{src+3}, s[56:57]")
        ln_scalars(a, 192, 193, 194, 195)
        a(f"s_add_u32 s41, s40, {44*n}")
        a("s_lshl_b32 s41, s41, 6")
        a("v_lshlrev_b32 v196, 2, v1")
        a("v_add_u32 v196, s41, v196")
        a(f"s_cmp_ge_u32 s41, {128*64}\ns_cselect_b32 s42, 0x100000, 0")
        a("v_add_u32 v196, s42, v196")
        a("s_mov_b64 s[58:59], exec\ns_mov_b64 exec, s[50:51]")
        a(f"buffer_store_dword v192, v196, s[{SO}:{SO+3}], 0 offen")
        a("s_movk_i32 s43, 0x2000")
        a(f"buffer_store_dword v193, v196, s[{SO}:{SO+3}], s43 offen")
        a("s_mov_b64 exec, s[58:59]")

def ln_scalars(a, vs, vq, t0, t1):
    a(f"v_mul_f32 v{vs}, 0x{f32bits(1.0/448.0):08x}, v{vs}")
    a(f"v_mul_f32 v{vq}, 0x{f32bits(1.0/448.0):08x}, v{vq}")
    a(f"v_fma_f32 v{vq}, -v{vs}, v{vs}, v{vq}")
    a(f"v_max_f32 v{vq}, 0, v{vq}")
    a(f"v_cvt_pk_bf16_f32 v{t0}, v{vs}, v{vq}")
    unpack(a, vs, vq, t0)
    a(f"v_add_f32 v{vq}, 0x{f32bits(1e-5):08x}, v{vq}")
    a(f"v_cvt_pk_bf16_f32 v{t0}, v{vq}, v{vq}")
    a(f"v_and_b32 v{vq}, s{S_MASK}, v{t0}")
    a(f"v_sqrt_f32 v{vq}, v{vq}")
    a(f"v_cvt_pk_bf16_f32 v{t0}, v{vq}, v{vq}")
    a(f"v_and_b32 v{vq}, s{S_MASK}, v{t0}")
    a(f"v_rcp_f32 v{vq}, v{vq}")

import struct
def f32bits(x): return struct.unpack("<I", struct.pack("<f", x))[0]

def k1_mod(a, first_id):
    SW, SC, SO = 16, 20, 24
    srd(a, SW, 60, D * 6 * D * 2); srd(a, SC, 14, D * 2); srd(a, SO, 12, 6 * D * 4, WS_MOD)
    a(f"s_sub_u32 s40, s2, {first_id}")
    a("s_lshl_b32 s41, s40, 8")
    a("v_and_b32 v1, 15, v0")
    a("v_lshrrev_b32 v2, 4, v0")
    a("v_mul_u32_u24 v3, 5376, v2")
    a("v_lshl_add_u32 v3, v1, 4, v3")
    a("v_add_u32 v3, s41, v3")
    a("v_lshlrev_b32 v4, 2, v0")
    a(f"buffer_load_dword v5, v4, s[{SC}:{SC+3}], 0 offen")
    X = 16
    for i in range(28):
        a(f"s_mov_b32 s42, {i*16*5376}")
        a(f"buffer_load_dwordx4 v[{X+4*i}:{X+4*i+3}], v3, s[{SW}:{SW+3}], s42 offen")
    a("s_waitcnt vmcnt(28)")
    unpack(a, 6, 7, 5)
    for r in (6, 7):
        a(f"v_mul_f32 v{r+2}, 0x{f32bits(-1.4426950408889634):08x}, v{r}")
    a("v_exp_f32 v8, v8\nv_exp_f32 v9, v9")
    a("v_add_f32 v8, 1.0, v8\nv_add_f32 v9, 1.0, v9")
    a("v_rcp_f32 v8, v8\nv_rcp_f32 v9, v9")
    a("v_mul_f32 v6, v6, v8\nv_mul_f32 v7, v7, v9")
    rnd2(a, 6, 7, 10)
    a("v_lshlrev_b32 v4, 3, v0")
    a("v_cmp_gt_u32 vcc, 224, v0\ns_and_saveexec_b64 s[50:51], vcc")
    a("ds_write_b64 v4, v[6:7]")
    a("s_mov_b64 exec, s[50:51]")
    a("s_waitcnt lgkmcnt(0)\ns_barrier")
    SCV = 128
    a("v_lshlrev_b32 v4, 2, v2")
    for i in range(28):
        a(f"ds_read_b32 v{SCV+i}, v4 offset:{64*i}")
    ACC = 160
    for e in range(8): a(f"v_mov_b32 v{ACC+e}, 0")
    a("s_waitcnt lgkmcnt(0)")
    for i in range(28):
        if i % 4 == 0: a(f"s_waitcnt vmcnt({max(0, 28 - i - 4)})")
        for e in range(4):
            unpack(a, 12, 13, X + 4*i + e)
            sc = SCV + i
            if sc % 2 == 0:
                a(f"v_pk_fma_f32 v[{ACC+2*e}:{ACC+2*e+1}], v[12:13], v[{sc}:{sc+1}], v[{ACC+2*e}:{ACC+2*e+1}] op_sel_hi:[1,0,1]")
            else:
                a(f"v_pk_fma_f32 v[{ACC+2*e}:{ACC+2*e+1}], v[12:13], v[{sc-1}:{sc}], v[{ACC+2*e}:{ACC+2*e+1}] op_sel:[0,1,0] op_sel_hi:[1,1,1]")
    a("v_lshlrev_b32 v4, 9, v2\nv_lshl_add_u32 v4, v1, 5, v4")
    a(f"ds_write_b128 v4, v[{ACC}:{ACC+3}] offset:2048")
    a(f"ds_write_b128 v4, v[{ACC+4}:{ACC+7}] offset:2064")
    a("s_waitcnt lgkmcnt(0)\ns_barrier")
    a("v_cmp_gt_u32 vcc, 128, v0\ns_and_saveexec_b64 s[50:51], vcc")
    lab = a.newlabel("L_mod_done")
    a(f"s_cbranch_execz {lab}")
    a("v_lshlrev_b32 v4, 2, v0")
    for i in range(16):
        a(f"ds_read_b32 v{16+i}, v4 offset:{2048 + 512*i}")
    a("s_waitcnt lgkmcnt(0)")
    for i in range(1, 16):
        a(f"v_add_f32 v16, v16, v{16+i}")
    a("v_cvt_pk_bf16_f32 v17, v16, v16\nv_and_b32 v16, s%d, v17" % S_MASK)
    a("s_lshl_b32 s41, s40, 9\nv_add_u32 v4, s41, v4")
    a(f"buffer_store_dword v16, v4, s[{SO}:{SO+3}], 0 offen")
    a.label(lab)
    a("s_mov_b64 exec, s[50:51]")

def gen_k1(a):
    a("s_load_dwordx8 s[4:11], s[0:1], 0")
    a("s_load_dwordx2 s[12:13], s[0:1], %d" % KA['ws'])
    a("s_load_dwordx2 s[14:15], s[0:1], %d" % KA['c'])
    a("s_load_dwordx2 s[60:61], s[0:1], %d" % KA['wmod'])
    wave_id(a)
    a("s_cmp_ge_u32 s2, 256\ns_cbranch_scc1 L_k1_end")
    a("s_waitcnt lgkmcnt(0)")
    a("s_cmp_ge_u32 s2, 245\ns_cbranch_scc1 L_k1_stats")
    a("s_cmp_ge_u32 s2, 224\ns_cbranch_scc1 L_k1_mod")
    k1_main(a)
    a("s_endpgm")
    a.label("L_k1_mod")
    k1_mod(a, 224)
    a("s_endpgm")
    a.label("L_k1_stats")
    k1_stats(a, 245)
    a.label("L_k1_end")

def kernel(label, body, vgpr, accum=None, sgpr=100):
    accum = accum or min(256, (vgpr + 3) // 4 * 4)
    return f""".text
.globl {label}
.p2align 8
.type {label},@function
{label}:
{body}
    s_endpgm
.section .rodata,"a"
.p2align 6
.amdhsa_kernel {label}
  .amdhsa_next_free_vgpr {vgpr}
  .amdhsa_next_free_sgpr {sgpr}
  .amdhsa_accum_offset {accum}
  .amdhsa_group_segment_fixed_size 0
  .amdhsa_kernarg_size 112
  .amdhsa_user_sgpr_count 2
  .amdhsa_user_sgpr_kernarg_segment_ptr 1
  .amdhsa_system_sgpr_workgroup_id_x 1
.end_amdhsa_kernel
"""

HEADER = open("cdna_kernels/" + NAME + ".s.ref").read().split("; Override launch")[0]

def build(kernels):
    out = HEADER
    for (label, fn, grid, lds, vgpr) in kernels:
        out += f"; @launch kernel={label} grid=({grid},1,1) block=(256,1,1) lds={lds}\n"
    out += '.amdgcn_target "amdgcn-amd-amdhsa--gfx950"\n'
    for (label, fn, grid, lds, vgpr) in kernels:
        a = Asm(); fn(a); n = a.hazards()
        out += kernel(label, a.text(), vgpr)
    return out

if __name__ == "__main__":
    ks = [("k1_prep_kernel", gen_k1, 256, 18432, 200)]
    try:
        import gen2
        ks += gen2.kernels()
    except ImportError:
        pass
    txt = build(ks)
    open(sys.argv[1] if len(sys.argv) > 1 else "out.s", "w").write(txt)
    print("written", len(txt), "bytes")
```

```python
import sys
sys.path.insert(0, "dev")
import gen, gen2, gen3
def make(path, **kw):
    for k in ("mim_ks","mim_h1","mim_y","mim_ln2","mim_h","mim_o"):
        setattr(gen.cfg, k, kw.get(k, True))
    ks = [("k1_prep_kernel", gen.gen_k1, 256, 18432, 200)] + gen2.kernels()
    open(path, "w").write(gen.build(ks))
make("v_none.s", mim_ks=False, mim_h1=False, mim_y=False, mim_ln2=False, mim_h=False, mim_o=False)
make("v_ln2off.s", mim_ln2=False)
make("v_ln2ksoff.s", mim_ln2=False, mim_ks=False)
make("v_mlpoff.s", mim_ln2=False, mim_h=False, mim_o=False)
```

```python
import re

REG_RE = re.compile(r'^(-?\|?|abs\()?([vas])(\d+)\)?\|?$')
RNG_RE = re.compile(r'^(-?\|?|abs\()?([vas])\[(\d+):(\d+)\]\)?\|?$')

def regs_of(tok):
    tok = tok.strip()
    m = RNG_RE.match(tok)
    if m:
        return [(m.group(2), i) for i in range(int(m.group(3)), int(m.group(4)) + 1)]
    m = REG_RE.match(tok)
    if m:
        return [(m.group(2), int(m.group(3)))]
    if tok == 'vcc': return [('s', 106), ('s', 107)]
    if tok == 'vcc_lo': return [('s', 106)]
    if tok == 'vcc_hi': return [('s', 107)]
    if tok == 'exec': return [('s', 126), ('s', 127)]
    if tok == 'm0': return [('s', 124)]
    return []

TRANS = ('v_exp_f32', 'v_log_f32', 'v_rcp_f32', 'v_rsq_f32', 'v_sqrt_f32', 'v_sin_f32', 'v_cos_f32', 'v_rcp_iflag_f32')

class Ins:
    __slots__ = ('text', 'mn', 'ops', 'kind', 'rd', 'wr', 'label', 'target', 'dpp', 'sdwa_dst', 'passes', 'srcC')
    def __init__(self, text):
        self.text = text
        self.label = None; self.target = None
        self.rd = set(); self.wr = set(); self.kind = 'other'; self.dpp = False; self.sdwa_dst = False
        self.passes = 0; self.srcC = set()
        t = text.split(';')[0].strip()
        if t.endswith(':'):
            self.label = t[:-1]; self.kind = 'label'; self.mn = ''; self.ops = []; return
        if t.startswith('.') or t == '':
            self.kind = 'dir'; self.mn = ''; self.ops = []; return
        parts = t.split(None, 1)
        self.mn = mn = parts[0]
        rest = parts[1] if len(parts) > 1 else ''
        ops = []; depth = 0; cur = ''
        for ch in rest:
            if ch in '[(': depth += 1
            if ch in '])': depth -= 1
            if ch == ',' and depth == 0:
                ops.append(cur.strip()); cur = ''
            else:
                cur += ch
        if cur.strip(): ops.append(cur.strip())
        mods = ''
        if ops:
            last = ops[-1].split()
            if len(last) > 1:
                ops[-1] = last[0]; mods = ' '.join(last[1:])
        self.ops = ops
        R = regs_of
        base = mn.replace('_e32', '').replace('_e64', '').replace('_dpp', '').replace('_sdwa', '')
        if mn.startswith('v_mfma'):
            self.kind = 'mfma'
            self.passes = 8 if '32x32' in mn else 4
            self.wr = set(R(ops[0])); self.rd = set(R(ops[1]) + R(ops[2]) + R(ops[3])); self.srcC = set(R(ops[3]))
        elif mn.startswith('v_'):
            self.kind = 'valu'
            self.dpp = ('_dpp' in mn) or ('row_' in mods) or ('quad_perm' in mods)
            self.sdwa_dst = ('dst_sel:WORD' in mods) or ('dst_sel:BYTE' in mods)
            if base.startswith('v_cmp'):
                self.wr = set(R(ops[0]));
                for o in ops[1:]: self.rd |= set(R(o))
                if base.startswith('v_cmpx'): self.wr |= set(R('exec'))
            elif base in ('v_add_co_u32', 'v_sub_co_u32', 'v_addc_co_u32', 'v_subb_co_u32', 'v_subrev_co_u32'):
                self.wr = set(R(ops[0]) + R(ops[1]))
                for o in ops[2:]: self.rd |= set(R(o))
            elif base.startswith('v_permlane') and 'swap' in base:
                self.wr = set(R(ops[0]) + R(ops[1])); self.rd = set(self.wr)
            else:
                self.wr = set(R(ops[0]))
                for o in ops[1:]: self.rd |= set(R(o))
                if base in ('v_fmac_f32', 'v_dot2c_f32_bf16', 'v_pk_fmac_f16', 'v_mac_f32', 'v_writelane_b32') or self.dpp or self.sdwa_dst and 'UNUSED_PRESERVE' in mods:
                    self.rd |= set(R(ops[0]))
            if base in TRANS: self.kind = 'trans'
            self.rd |= set(R('exec'))
        elif mn.startswith('buffer_') or mn.startswith('global_'):
            lds = (' lds' in ' ' + mods) or ('_lds_' in mn)
            if mn.startswith('buffer_wbl2') or mn.startswith('buffer_inv'):
                self.kind = 'vmem'
            elif 'store' in mn:
                self.kind = 'vstore'
                for o in ops: self.rd |= set(R(o))
            elif 'atomic' in mn:
                self.kind = 'vmem'
                for o in ops: self.rd |= set(R(o))
                if 'sc0' in mods: self.wr = set(R(ops[0]))
            elif lds:
                self.kind = 'vmemlds'
                for o in ops: self.rd |= set(R(o))
                self.rd |= set(R('m0'))
            else:
                self.kind = 'vload'
                self.wr = set(R(ops[0]))
                for o in ops[1:]: self.rd |= set(R(o))
                if 'd16' in mn: self.rd |= set(R(ops[0]))
        elif mn.startswith('ds_'):
            if mn.startswith('ds_read') or mn.startswith('ds_bpermute') or mn.startswith('ds_swizzle') or mn.startswith('ds_permute'):
                self.kind = 'dsread'
                self.wr = set(R(ops[0]))
                for o in ops[1:]: self.rd |= set(R(o))
            else:
                self.kind = 'dswrite'
                for o in ops: self.rd |= set(R(o))
        elif mn.startswith('s_'):
            self.kind = 'salu'
            if mn in ('s_branch',) or mn.startswith('s_cbranch'):
                self.kind = 'branch'; self.target = ops[0]
            elif mn in ('s_waitcnt', 's_barrier', 's_endpgm', 's_sleep', 's_setprio', 's_set_gpr_idx_on', 's_set_gpr_idx_off'):
                self.kind = 'misc'
            elif mn == 's_nop':
                self.kind = 'nop'
            elif mn.startswith('s_cmp'):
                for o in ops: self.rd |= set(R(o))
            elif mn.startswith('s_load') or mn in ('s_memtime', 's_memrealtime'):
                self.kind = 'smem'
                self.wr = set(R(ops[0]))
                for o in ops[1:]: self.rd |= set(R(o))
            else:
                self.wr = set(R(ops[0]))
                for o in ops[1:]: self.rd |= set(R(o))
                if 'saveexec' in mn:
                    self.wr |= set(R('exec')); self.rd |= set(R('exec'))
    def states(self):
        if self.kind == 'nop':
            return int(self.ops[0], 0) + 1
        if self.kind in ('label', 'dir'):
            return 0
        return 1

def isv(r): return r[0] in ('v', 'a')
def iss(r): return r[0] == 's'

def need(p, c):
    n = 0
    pv = {r for r in p.wr if isv(r)}; ps = {r for r in p.wr if iss(r)}
    pvalu = p.kind in ('valu', 'trans')
    cvalu = c.kind in ('valu', 'trans')
    if pvalu:
        if c.kind == 'mfma' and (pv & c.rd): n = max(n, 2)
        if ps:
            if c.kind in ('vload', 'vstore', 'vmem', 'vmemlds') and (ps & c.rd): n = max(n, 5)
            if cvalu:
                cs = {r for r in c.rd if iss(r) and r[1] not in (126, 127)}
                if ps & cs:
                    n = max(n, 4 if c.mn.startswith('v_readlane') or c.mn.startswith('v_writelane') else 2)
                if (('s', 126) in ps or ('s', 127) in ps) and c.dpp: n = max(n, 5)
            if c.kind == 'mfma' and (('s', 126) in ps): n = max(n, 4)
        if cvalu and (pv & c.rd):
            if c.mn.startswith('v_readfirstlane') or c.mn.startswith('v_readlane'): n = max(n, 1)
            if c.dpp: n = max(n, 2)
            if c.mn.startswith('v_permlane'): n = max(n, 2)
            if p.kind == 'trans' and c.kind != 'trans': n = max(n, 1)
            if p.kind == 'trans' and c.kind == 'trans': n = max(n, 1)
            if p.sdwa_dst: n = max(n, 1)
    if p.kind == 'mfma':
        lat = {4: 8, 8: 12}[p.passes]; ovl = {4: 6, 8: 10}[p.passes]; war = {4: 3, 8: 7}[p.passes]
        if c.kind == 'mfma':
            ab = c.rd - c.srcC
            a_regs = set(regs_of(c.ops[1]) + regs_of(c.ops[2]))
            if pv & a_regs: n = max(n, lat)
            if pv & c.srcC:
                if not (pv == c.srcC and p.passes == c.passes): n = max(n, ovl)
            elif pv & c.wr:
                n = max(n, lat)
        else:
            if (pv & c.rd) or (pv & c.wr): n = max(n, lat)
            if cvalu and (p.srcC & c.wr): n = max(n, war)
    if p.kind == 'salu' and ('s', 124) in ps and (c.kind == 'vmemlds'): n = max(n, 1)
    if p.kind == 'vstore' and ('x4' in p.mn or 'x3' in p.mn) and (cvalu or c.kind in ('vload', 'dsread')):
        data = set(regs_of(p.ops[0])) if p.mn.startswith('buffer') else set(regs_of(p.ops[1]))
        if data & c.wr: n = max(n, 2 if cvalu else 1)
    if p.kind == 'dswrite' and ('b128' in p.mn or 'b96' in p.mn) and cvalu:
        data = set(regs_of(p.ops[1]))
        if data & c.wr: n = max(n, 2)
    return n

class Asm:
    def __init__(self):
        self.ins = []
        self.nlabel = 0
    def __call__(self, text):
        for line in text.split('\n'):
            line = line.strip()
            if line:
                self.ins.append(Ins(line))
    def label(self, name):
        self.ins.append(Ins(name + ':'))
    _uid = [0]
    def newlabel(self, base):
        Asm._uid[0] += 1
        return f"{base}_{Asm._uid[0]}"
    def comment(self, s):
        self.ins.append(Ins('; ' + s))

    def _fix(self, seq_idx, ins, insert_at):
        pass

    def hazards(self):
        nins = 0
        for rnd in range(4):
            ins = self.ins
            labels = {x.label: i for i, x in enumerate(ins) if x.label}
            preds = {}
            for i, x in enumerate(ins):
                if x.kind == 'branch' and x.target in labels:
                    preds.setdefault(labels[x.target], []).append(i)
            def back(i, budget):
                out = []; stack = [(i, 0)]; visited = set()
                while stack:
                    j, d = stack.pop()
                    if (j, d) in visited: continue
                    visited.add((j, d))
                    if j < len(ins) and ins[j].label is not None:
                        for b in preds.get(j, []):
                            out.append((ins[b], d))
                            if d + 1 < budget: stack.append((b, d + 1))
                    k = j - 1
                    if k < 0: continue
                    x = ins[k]
                    if x.kind == 'branch' and x.mn == 's_branch': continue
                    if x.mn == 's_endpgm': continue
                    if x.kind not in ('label', 'dir'): out.append((x, d))
                    nd = d + x.states()
                    if nd < budget: stack.append((k, nd))
                return out
            add = {}
            for i, c in enumerate(ins):
                if c.kind in ('label', 'dir', 'nop', 'misc', 'branch'): continue
                worst = 0
                for p, d in back(i, 13):
                    n = need(p, c)
                    if n > d: worst = max(worst, n - d)
                if worst: add[i] = worst
            if not add: break
            new = []
            last_added_at = -100
            for i, c in enumerate(ins):
                if i in add:
                    new.append(Ins(f's_nop {add[i] - 1}')); nins += 1
                new.append(c)
            self.ins = new
        return nins

    def text(self):
        out = []
        for x in self.ins:
            out.append(x.text if (x.label or x.kind == 'dir') else '    ' + x.text)
        return '\n'.join(out)
```

```python
import sys, struct
sys.path.insert(0, "dev")
from asmgen import Asm

NAME = "adaLN_cond__ssm_conv_h3__dense_activation_silu__prompt"
S, D, F = 2048, 448, 1792
SZ_T = D * S * 2
SZ_H = S * F * 2
PQ, PK, PV, PSH, PKF, PD, PBX, PW1, PW2, PC, PWM, POUT, PDBG, PWS = 4, 6, 8, 10, 12, 14, 16, 18, 20, 22, 24, 26, 28, 30
WS_KVT, WS_YT, WS_MOD, WS_FLG, WS_H = 0x000000, 0x200000, 0x400000, 0x410000, 0x800000
F_EPOCH, F_X, F_A, F_M, F_B, F_C, F_SIZE = 0x0, 0x1000, 0x5000, 0x9000, 0xA000, 0xE000, 0x12000
STAMP_WS = 0x1800000
R0, R1, R2, R3, R4 = 32, 36, 40, 44, 48
SFLG = 52
T0 = 56
STAG = 88; S_MASK = 90; S_WAVE = 91; S_X = 92; S_SLOT = 93; S_PURE = 94; S_I = 95; S_J = 96; S_XCC = 97; S_T1 = 98; S_T2 = 99
MF = "v_mfma_f32_16x16x32_bf16"
SPIN = 1 << 17

class Cfg:
    stamps = None
    code_prefetch = True
    pretouch = True
    force_global = False
cfg = Cfg()

def f32bits(x): return struct.unpack("<I", struct.pack("<f", x))[0]
def hexf(x): return "0x%08x" % f32bits(x)

def srd(a, r, lo, size, add=0):
    if isinstance(add, str):
        a(f"s_add_u32 s{r}, s{lo}, {add}\ns_addc_u32 s{r+1}, s{lo+1}, 0")
    elif add == 0:
        a(f"s_mov_b32 s{r}, s{lo}\ns_mov_b32 s{r+1}, s{lo+1}")
    else:
        a(f"s_add_u32 s{r}, s{lo}, {add}\ns_addc_u32 s{r+1}, s{lo+1}, 0")
    a(f"s_mov_b32 s{r+2}, {size}\ns_mov_b32 s{r+3}, 0x20000")
def sd(r): return f"s[{r}:{r+3}]"

def unpack(a, dlo, dhi, src):
    a(f"v_lshlrev_b32 v{dlo}, 16, v{src}")
    a(f"v_and_b32 v{dhi}, s{S_MASK}, v{src}")
def pk(a, op, d, x, y, z=None, mods=""):
    if z is None: a(f"v_pk_{op}_f32 v[{d}:{d+1}], v[{x}:{x+1}], v[{y}:{y+1}] {mods}")
    else: a(f"v_pk_{op}_f32 v[{d}:{d+1}], v[{x}:{x+1}], v[{y}:{y+1}], v[{z}:{z+1}] {mods}")

class VM:
    def __init__(self, a): self.a = a; self.q = []
    def op(self, text, tag=None):
        self.a(text); self.q.append(tag)
    def wait(self, tag):
        idx = max(i for i, t in enumerate(self.q) if t == tag)
        n = len(self.q) - 1 - idx
        self.a(f"s_waitcnt vmcnt({min(n, 63)})")
    def drain(self):
        self.a("s_waitcnt vmcnt(0)"); self.q = []

def stamp(a, name):
    if cfg.stamps and name in cfg.stamps:
        j = cfg.stamps[name]
        a(f"s_memrealtime s[{72+2*j}:{73+2*j}]")
def stamp_flush(a):
    if not cfg.stamps: return
    lab = a.newlabel("L_st")
    a("s_waitcnt lgkmcnt(0)")
    a(f"s_cmp_lg_u32 s{S_WAVE}, 0\ns_cbranch_scc1 {lab}")
    a(f"s_add_u32 s56, s{PWS}, {STAMP_WS}\ns_addc_u32 s57, s{PWS+1}, 0")
    a("s_lshl_b32 s58, s2, 6\ns_add_u32 s56, s56, s58\ns_addc_u32 s57, s57, 0")
    a("v_mov_b32 v4, 0")
    for j in range(8):
        a(f"v_mov_b32 v5, s{72+2*j}")
        a(f"global_store_dword v4, v5, s[56:57] offset:{4*j}")
    a.label(lab)

def wave0(a):
    lab = a.newlabel("L_w0")
    a(f"s_cmp_lg_u32 s{S_WAVE}, 0\ns_cbranch_scc1 {lab}")
    return lab

def signal(a, off_sgpr, const, local):
    lab = wave0(a)
    a(f"s_add_u32 s56, s{off_sgpr}, {const}")
    a(f"v_mov_b32 v250, s56\nv_mov_b32 v252, s{STAG}\nv_mov_b32 v253, s{STAG+1}")
    a("s_mov_b64 exec, 1")
    if local:
        l2 = a.newlabel("L_sg"); l3 = a.newlabel("L_sd")
        a(f"s_cmp_eq_u32 s{S_PURE}, 0\ns_cbranch_scc1 {l2}")
        a(f"buffer_store_dwordx2 v[252:253], v250, {sd(SFLG)}, 0 offen")
        a(f"s_branch {l3}")
        a.label(l2)
        a(f"buffer_store_dwordx2 v[252:253], v250, {sd(SFLG)}, 0 offen sc1")
        a.label(l3)
    else:
        a(f"buffer_store_dwordx2 v[252:253], v250, {sd(SFLG)}, 0 offen sc1")
    a("s_mov_b64 exec, -1")
    a.label(lab)

def poll(a, addr_regs, tagmask=False):
    lab = wave0(a)
    loop = a.newlabel("L_poll"); done = a.newlabel("L_pdone")
    a(f"s_mov_b32 s56, 0")
    a.label(loop)
    for n, r in enumerate(addr_regs):
        a(f"buffer_load_dwordx2 v[{240+2*n}:{241+2*n}], v{r}, {sd(SFLG)}, 0 offen sc1")
    a("s_waitcnt vmcnt(0)")
    for n, r in enumerate(addr_regs):
        if tagmask:
            a(f"v_or_b32 v{241+2*n}, 15, v{241+2*n}")
        if n == 0:
            a(f"v_cmp_ne_u64 vcc, s[{STAG}:{STAG+1}], v[240:241]" if not tagmask else f"v_cmp_ne_u64 vcc, s[58:59], v[240:241]")
        else:
            a(f"v_cmp_ne_u64 s[60:61], s[{STAG}:{STAG+1}], v[{240+2*n}:{241+2*n}]" if not tagmask else f"v_cmp_ne_u64 s[60:61], s[58:59], v[{240+2*n}:{241+2*n}]")
            a("s_or_b64 vcc, vcc, s[60:61]")
    a(f"s_cmp_eq_u64 vcc, 0\ns_cbranch_scc1 {done}")
    a(f"s_add_u32 s56, s56, 1\ns_cmp_lt_u32 s56, {SPIN}\ns_cbranch_scc1 {loop}")
    a.label(done)
    a.label(lab)

L_KC, L_CSTR, L_CH = 0, 4160, 16640
L_U, L_USTR = 33280, 4608
L_RED = L_U + 2 * L_USTR
L_XT, L_TAB, L_RING, NSLOT = 0, 57344, 60928, 6
RSTR = NSLOT * 4096
LDS_BYTES = L_RING + 4 * RSTR + 4096

QF = 144
GF = 32
V_DMA_LROW = 200
V_W1A, V_W1B = 202, 203
V_QOFF = 204

def prologue(a):
    if cfg.code_prefetch: a("s_getpc_b64 s[62:63]")
    a("s_load_dwordx16 s[4:19], s[0:1], 0\ns_load_dwordx8 s[20:27], s[0:1], 64\ns_load_dwordx4 s[28:31], s[0:1], 96")
    if cfg.stamps:
        for j in range(8): a(f"s_mov_b32 s{72+2*j}, 0")
    stamp(a, "start")
    a(f"v_readfirstlane_b32 s{S_WAVE}, v0")
    a(f"s_mov_b32 s{S_MASK}, 0xffff0000")
    a(f"s_and_b32 s{S_X}, s2, 7\ns_lshr_b32 s{S_SLOT}, s2, 3")
    a(f"s_lshr_b32 s{S_WAVE}, s{S_WAVE}, 6")
    a("s_cmp_ge_u32 s2, 256\ns_cbranch_scc1 L_end")
    a(f"s_cmp_eq_u32 s{S_X}, 7\ns_cselect_b32 s56, 28, 32\ns_cmp_ge_u32 s{S_SLOT}, s56\ns_cbranch_scc1 L_end")
    a(f"s_getreg_b32 s{S_XCC}, hwreg(HW_REG_XCC_ID, 0, 4)")
    a("v_and_b32 v1, 63, v0\nv_and_b32 v2, 15, v0\nv_bfe_u32 v3, v0, 4, 2")
    a(f"s_mul_hi_u32 s56, s{S_SLOT}, {(2**32 + 6)//7}")
    a(f"s_mul_i32 s57, s56, 7\ns_sub_u32 s{S_J}, s{S_SLOT}, s57")
    a(f"s_min_u32 s56, s56, 3\ns_lshl_b32 s{S_I}, s{S_X}, 2\ns_add_u32 s{S_I}, s{S_I}, s56")
    a("s_waitcnt lgkmcnt(0)")
    srd(a, SFLG, PWS, F_SIZE, WS_FLG)
    a(f"s_add_u32 s56, s{PWS}, {WS_FLG}\ns_addc_u32 s57, s{PWS+1}, 0")
    a(f"s_load_dwordx2 s[{STAG}:{STAG+1}], s[56:57], {F_EPOCH}")

def code_prefetch(a, vm):
    if not cfg.code_prefetch: return
    a("s_sub_u32 s64, s62, 4\ns_subb_u32 s65, s63, 0\ns_mov_b32 s66, (L_code_end - %s_kernel)\ns_mov_b32 s67, 0x20000" % NAME)
    a(f"s_lshl_b32 s56, s{S_SLOT}, 10\ns_lshl_b32 s57, s{S_WAVE}, 8\ns_add_u32 s56, s56, s57")
    a("v_and_b32 v238, 1, v1\nv_lshlrev_b32 v238, 7, v238\nv_add_u32 v238, s56, v238")
    a("s_mov_b64 exec, 3")
    a("buffer_load_dword v239, v238, s[64:67], 0 offen")
    a("s_mov_b64 exec, -1")
    vm.q.append("cpf")

def tag_and_publish(a):
    a("s_waitcnt lgkmcnt(0)")
    a(f"s_add_u32 s{STAG}, s{STAG}, 1\ns_addc_u32 s{STAG+1}, s{STAG+1}, 0")
    lab = wave0(a)
    a(f"s_andn2_b32 s56, s{STAG+1}, 15\ns_or_b32 s56, s56, s{S_XCC}")
    a(f"s_lshl_b32 s57, s2, 6\ns_add_u32 s57, s57, {F_X}")
    a(f"v_mov_b32 v250, s57\nv_mov_b32 v252, s{STAG}\nv_mov_b32 v253, s56")
    a("s_mov_b64 exec, 1")
    a(f"buffer_store_dwordx2 v[252:253], v250, {sd(SFLG)}, 0 offen sc1")
    a("s_mov_b64 exec, -1")
    a.label(lab)

def purity_check(a):
    lab = wave0(a)
    loop = a.newlabel("L_px"); done = a.newlabel("L_pxd")
    a(f"s_cmp_eq_u32 s{S_X}, 7\ns_cselect_b32 s57, 27, 31")
    a("v_min_u32 v244, s57, v1")
    a(f"v_lshlrev_b32 v244, 3, v244\nv_add_u32 v244, s{S_X}, v244\nv_lshlrev_b32 v244, 6, v244\nv_add_u32 v244, {F_X}, v244")
    a(f"s_or_b32 s59, s{STAG+1}, 15\ns_mov_b32 s58, s{STAG}")
    a("s_mov_b32 s56, 0")
    a.label(loop)
    a(f"buffer_load_dwordx2 v[240:241], v244, {sd(SFLG)}, 0 offen sc1")
    a("s_waitcnt vmcnt(0)")
    a("v_or_b32 v243, 15, v241\nv_mov_b32 v242, v240")
    a("v_cmp_ne_u64 vcc, s[58:59], v[242:243]")
    a(f"s_cmp_eq_u64 vcc, 0\ns_cbranch_scc1 {done}")
    a(f"s_add_u32 s56, s56, 1\ns_cmp_lt_u32 s56, {SPIN}\ns_cbranch_scc1 {loop}")
    a.label(done)
    a("v_and_b32 v241, 15, v241")
    a(f"v_cmp_ne_u32 vcc, s{S_XCC}, v241")
    a("s_or_b64 vcc, vcc, vcc")
    a(f"s_cmp_eq_u64 vcc, 0\ns_cselect_b32 s57, 1, 0")
    a(f"s_cmp_lt_u32 s56, {SPIN}\ns_cselect_b32 s57, s57, 0")
    if cfg.force_global: a("s_mov_b32 s57, 0")
    a(f"v_mov_b32 v240, s57\nv_mov_b32 v241, {LDS_BYTES - 16}")
    a("ds_write_b32 v241, v240")
    a("s_waitcnt lgkmcnt(0)")
    a.label(lab)

def purity_fetch(a):
    a(f"v_mov_b32 v241, {LDS_BYTES - 16}")
    a("ds_read_b32 v240, v241")
    a("s_waitcnt lgkmcnt(0)")
    a(f"v_readfirstlane_b32 s{S_PURE}, v240")

def dma_consts(a):
    a(f"v_lshrrev_b32 v{V_DMA_LROW}, 3, v1")
    a("v_and_b32 v201, 7, v1\nv_and_b32 v205, 1, v3\nv_lshlrev_b32 v205, 1, v205\nv_xor_b32 v201, v201, v205")
    a("v_lshlrev_b32 v201, 4, v201")
    a(f"v_mul_u32_u24 v{V_W1A}, 3584, v{V_DMA_LROW}")
    a(f"s_lshl_b32 s56, s{S_J}, 9\ns_lshl_b32 s57, s{S_WAVE}, 7\ns_add_u32 s56, s56, s57")
    a(f"v_add_u32 v{V_W1A}, s56, v{V_W1A}")
    a(f"v_xor_b32 v205, 64, v201\nv_add_u32 v{V_W1B}, v{V_W1A}, v205\nv_add_u32 v{V_W1A}, v{V_W1A}, v201")
    a(f"s_lshl_b32 s56, s{S_I}, 6\ns_lshl_b32 s57, s{S_WAVE}, 4\ns_add_u32 s56, s56, s57\ns_mul_i32 s56, s56, 896")
    a(f"v_mul_u32_u24 v{V_QOFF}, 896, v2\nv_lshl_add_u32 v{V_QOFF}, v3, 4, v{V_QOFF}\nv_add_u32 v{V_QOFF}, s56, v{V_QOFF}")

S_RING = 70
def ring_base(a):
    a(f"s_mul_i32 s{S_RING}, s{S_WAVE}, {RSTR}\ns_add_u32 s{S_RING}, s{S_RING}, {L_RING}")

def dma_w1(ks, srdreg):
    L = []
    for qq in range(4):
        v = V_W1A if qq % 2 == 0 else V_W1B
        L.append(f"s_add_u32 m0, s{S_RING}, {(ks % NSLOT)*4096 + 1024*qq}\ns_mov_b32 s71, {(32*ks + 8*qq)*3584}\n"
                 f"buffer_load_dwordx4 v{v}, {sd(srdreg)}, s71 offen lds")
    return L
def q_loads(srdreg):
    return [f"buffer_load_dwordx4 v[{QF+4*ks}:{QF+4*ks+3}], v{V_QOFF}, {sd(srdreg)}, 0 offen offset:{64*ks}" for ks in range(14)]

def main_role(a):
    vm = VM(a)
    srd(a, R0, PK, SZ_T); srd(a, R1, PV, SZ_T); srd(a, R2, PSH, D * 8)
    a("v_and_b32 v4, 31, v0\nv_lshrrev_b32 v5, 5, v0")
    a(f"s_mul_i32 s56, s{S_SLOT}, {64*896}\ns_lshl_b32 s57, s{S_X}, 7\ns_add_u32 s56, s56, s57")
    a(f"v_mul_u32_u24 v6, {8*896}, v5\nv_lshl_add_u32 v6, v4, 2, v6\nv_add_u32 v6, s56, v6")
    a(f"v_subrev_u32 v7, {3*896}, v6")
    a(f"s_movk_i32 s58, {4*896}")
    a(f"s_lshl_b32 s59, s{S_X}, 9\nv_lshlrev_b32 v8, 4, v4\nv_add_u32 v8, s59, v8")
    VW, VK, VV = 144, 12, 24
    vm.op(f"buffer_load_dwordx4 v[{VW}:{VW+3}], v8, {sd(R2)}, 0 offen", "w")
    for i in range(3): vm.op(f"buffer_load_dword v{VK+i}, v7, {sd(R0)}, 0 offen offset:{896*i}", "k")
    for i in range(8): vm.op(f"buffer_load_dword v{VK+3+i}, v6, {sd(R0)}, {'0' if i < 4 else 's58'} offen offset:{896*(i%4)}", "k")
    for i in range(8): vm.op(f"buffer_load_dword v{VV+i}, v6, {sd(R1)}, {'0' if i < 4 else 's58'} offen offset:{896*(i%4)}", "v")
    SC2, SH, SCH, SCB = 60, 61, 62, 63
    code_prefetch(a, vm)
    a(f"s_lshr_b32 s{SC2}, s{S_WAVE}, 1\ns_and_b32 s{SH}, s{S_WAVE}, 1")
    a(f"s_lshl_b32 s{SCH}, s{S_X}, 6\ns_lshl_b32 s56, s{S_SLOT}, 1\ns_add_u32 s{SCH}, s{SCH}, s56\ns_add_u32 s{SCH}, s{SCH}, s{SC2}")
    a(f"s_lshl_b32 s{SCB}, s{SCH}, 12")
    srd(a, R3, PKF, 4096, f"s{SCB}")
    srd(a, R4, PD, D * 2)
    a(f"s_lshl_b32 s56, s{SH}, 11\nv_lshlrev_b32 v9, 4, v1\nv_add_u32 v92, s56, v9")
    a("v_sub_u32 v93, 4080, v92\nv_sub_u32 v94, 3056, v92\nv_subrev_u32 v95, 8, v93\nv_subrev_u32 v141, 8, v94")
    vm.op(f"buffer_load_dwordx4 v[96:99], v93, {sd(R3)}, 0 offen", "kf")
    vm.op(f"buffer_load_dwordx2 v[100:101], v95, {sd(R3)}, 0 offen", "kf")
    vm.op(f"buffer_load_dwordx4 v[104:107], v94, {sd(R3)}, 0 offen", "kf")
    vm.op(f"buffer_load_dwordx2 v[102:103], v141, {sd(R3)}, 0 offen", "kf")
    a(f"s_lshl_b32 s56, s{SCH}, 1\nv_mov_b32 v141, s56")
    vm.op(f"buffer_load_ushort v140, v141, {sd(R4)}, 0 offen", "D")
    srd(a, R2, PWS, SZ_T, WS_KVT)
    if cfg.pretouch:
        a(f"s_lshl_b32 s56, s{S_X}, 6\ns_lshl_b32 s57, s{S_WAVE}, 4\ns_add_u32 s56, s56, s57\ns_lshl_b32 s56, s56, 12\ns_lshl_b32 s57, s{S_SLOT}, 7\ns_add_u32 s56, s56, s57")
        a("v_lshlrev_b32 v142, 12, v2\nv_add_u32 v142, s56, v142")
        a("s_mov_b64 exec, 0xffff")
        vm.op(f"buffer_load_dword v143, v142, {sd(R2)}, 0 offen sc1", "pt")
        a("s_mov_b64 exec, -1")
    tag_and_publish(a)
    stamp(a, "issued")
    PITCH = 144
    a(f"v_mul_u32_u24 v10, {PITCH}, v4\nv_lshl_add_u32 v10, v5, 4, v10\nv_add_u32 v10, {L_U}, v10")
    a("v_lshrrev_b32 v11, 3, v0\nv_and_b32 v23, 1, v11\nv_lshlrev_b32 v23, 5, v23\nv_lshrrev_b32 v62, 1, v11\nv_add_u32 v23, v23, v62")
    a(f"v_mul_u32_u24 v23, {PITCH}, v23\nv_and_b32 v62, 7, v0\nv_lshl_add_u32 v23, v62, 4, v23\nv_add_u32 v23, {L_U}, v23")
    a(f"s_lshl_b32 s56, s{S_X}, 18\ns_lshl_b32 s57, s{S_SLOT}, 7\ns_add_u32 s56, s56, s57")
    a("v_lshlrev_b32 v11, 12, v11\nv_lshl_add_u32 v11, v62, 4, v11\nv_add_u32 v11, s56, v11")
    a(f"s_mov_b32 s{S_T1}, {32 * 4096}")
    W, KU, R, P = 32, 40, 64, 80
    vm.wait("w")
    a(f"v_lshlrev_b32 v{W+0}, 16, v{VW+0}\nv_and_b32 v{W+2}, s{S_MASK}, v{VW+0}")
    a(f"v_lshlrev_b32 v{W+4}, 16, v{VW+1}\nv_and_b32 v{W+6}, s{S_MASK}, v{VW+1}")
    a(f"v_lshlrev_b32 v{W+1}, 16, v{VW+2}\nv_and_b32 v{W+3}, s{S_MASK}, v{VW+2}")
    a(f"v_lshlrev_b32 v{W+5}, 16, v{VW+3}\nv_and_b32 v{W+7}, s{S_MASK}, v{VW+3}")
    vm.wait("k")
    stamp(a, "k_in")
    for i in range(11): unpack(a, KU + 2*i, KU + 2*i + 1, VK + i)
    for t in range(8):
        for n, j in enumerate((3, 2, 1, 0)):
            kr = KU + 2 * (t + 3 - j)
            if n == 0: pk(a, "mul", R + 2*t, kr, W + 2*j)
            else: pk(a, "fma", R + 2*t, kr, W + 2*j, R + 2*t)
    vm.wait("v")
    for t in range(8):
        unpack(a, P + 2*(t & 1), P + 2*(t & 1) + 1, VV + t)
        pk(a, "mul", R + 2*t, R + 2*t, P + 2*(t & 1))
    for u in range(4):
        a(f"v_cvt_pk_bf16_f32 v{84+u}, v{R+4*u}, v{R+4*u+2}")
        a(f"v_cvt_pk_bf16_f32 v{88+u}, v{R+4*u+1}, v{R+4*u+3}")
    a("ds_write_b128 v10, v[84:87]")
    a(f"ds_write_b128 v10, v[88:91] offset:{32*PITCH}")
    a("s_waitcnt lgkmcnt(0)\ns_barrier")
    a("ds_read_b128 v[64:67], v23")
    a(f"ds_read_b128 v[68:71], v23 offset:{16*PITCH}")
    a("s_waitcnt lgkmcnt(1)")
    vm.op(f"buffer_store_dwordx4 v[64:67], v11, {sd(R2)}, 0 offen", "st")
    a("s_waitcnt lgkmcnt(0)")
    vm.op(f"buffer_store_dwordx4 v[68:71], v11, {sd(R2)}, s{S_T1} offen", "st")
    stamp(a, "kv_st")
    purity_check(a)
    a(f"s_mul_i32 s64, s{SC2}, {L_CH}")
    a("s_mov_b32 s65, 0xffff")
    a("v_add_u32 v92, s64, v92")
    vm.wait("kf")
    for i, (x4, x2) in enumerate(((96, 100), (104, 102))):
        Sx = {-2: x2, -1: x2 + 1, 0: x4, 1: x4 + 1, 2: x4 + 2, 3: x4 + 3}
        T = 108 + 16 * i
        for e in range(4):
            a(f"v_alignbit_b32 v{T+e}, v{Sx[3-e]}, v{Sx[3-e]}, 16")
            a(f"v_bfi_b32 v{T+4+e}, s65, v{Sx[3-e]}, v{Sx[2-e]}")
            a(f"v_alignbit_b32 v{T+8+e}, v{Sx[2-e]}, v{Sx[2-e]}, 16")
            a(f"v_bfi_b32 v{T+12+e}, s65, v{Sx[2-e]}, v{Sx[1-e]}")
        for c in range(4):
            a(f"ds_write_b128 v92, v[{T+4*c}:{T+4*c+3}] offset:{c*L_CSTR + 1024*i}")
    a("v_mov_b32 v28, 0\nv_mov_b32 v29, 0\nv_mov_b32 v30, 0\nv_mov_b32 v31, 0")
    a(f"v_lshrrev_b32 v12, 2, v1\nv_mul_u32_u24 v12, {L_CSTR}, v12\nv_and_b32 v13, 3, v1\nv_lshl_add_u32 v12, v13, 4, v12")
    a("s_add_u32 s56, s64, 4096\nv_add_u32 v12, s56, v12")
    lz = a.newlabel("L_nz")
    a(f"s_cmp_eq_u32 s{SH}, 0\ns_cbranch_scc0 {lz}")
    a("s_mov_b64 exec, 0xffff\nds_write_b128 v12, v[28:31]\ns_mov_b64 exec, -1")
    a.label(lz)
    vm.drain()
    a("s_waitcnt lgkmcnt(0)\ns_barrier")
    purity_fetch(a)
    lp = a.newlabel("L_pure1")
    a(f"s_cmp_eq_u32 s{S_PURE}, 1\ns_cbranch_scc1 {lp}")
    a(f"buffer_store_dwordx4 v[64:67], v11, {sd(R2)}, 0 offen sc1")
    a(f"buffer_store_dwordx4 v[68:71], v11, {sd(R2)}, s{S_T1} offen sc1")
    a("s_waitcnt vmcnt(0)\ns_barrier")
    a.label(lp)
    a(f"s_lshl_b32 s57, s2, 6")
    signal(a, 57, F_A, True)
    stamp(a, "fa")
    a(f"s_mul_i32 s66, s{SC2}, {L_USTR}\ns_add_u32 s66, s66, {L_U}")
    a("v_add_u32 v13, s66, v9")
    lz = a.newlabel("L_nz")
    a(f"s_cmp_eq_u32 s{SH}, 0\ns_cbranch_scc0 {lz}")
    a("s_mov_b64 exec, 0x3fffffff\nds_write_b128 v13, v[28:31]\ns_mov_b64 exec, -1")
    a.label(lz)
    dma_consts(a); ring_base(a)
    srd(a, R0, PQ, SZ_T); srd(a, R1, PW1, D * F * 2); srd(a, R3, PWS, SZ_T, WS_YT)
    a(f"v_and_b32 v33, 3, v2\nv_sub_u32 v33, 3, v33\nv_mul_u32_u24 v33, {L_CSTR}, v33")
    a("v_lshrrev_b32 v34, 2, v2\nv_lshlrev_b32 v34, 3, v34\nv_sub_u32 v33, v33, v34\nv_lshl_add_u32 v33, v3, 4, v33")
    a(f"s_lshl_b32 s67, s{SH}, 8")
    a(f"s_add_u32 s56, s64, {4056 - 64*3 - 512*7}\ns_sub_u32 s56, s56, s67\nv_add_u32 v33, s56, v33")
    a("v_lshlrev_b32 v34, 5, v2\nv_lshl_add_u32 v34, v3, 4, v34")
    a(f"s_add_u32 s56, s66, {448 - 64*3}\ns_sub_u32 s56, s56, s67\nv_add_u32 v34, s56, v34")
    a(f"v_and_b32 v35, 31, v1\nv_lshlrev_b32 v35, 3, v35\nv_add_u32 v35, s{S_X}, v35\nv_lshlrev_b32 v35, 6, v35\nv_add_u32 v35, {F_A}, v35")
    poll(a, [35])
    a("s_waitcnt lgkmcnt(0)\ns_barrier")
    stamp(a, "s1")
    a(f"s_lshl_b32 s68, s{SH}, 11")
    a(f"s_add_u32 s56, s66, s68\ns_add_u32 s56, s56, 480")
    a(f"s_add_u32 s69, s{SCB}, s68")
    a("s_mov_b32 m0, s56")
    vm.op(f"buffer_load_dwordx4 v9, {sd(R2)}, s69 offen sc1 lds", "u")
    a("s_add_u32 m0, s56, 1024\ns_add_u32 s57, s69, 1024")
    vm.op(f"buffer_load_dwordx4 v9, {sd(R2)}, s57 offen sc1 lds", "u")
    vm.wait("u")
    a("s_barrier")
    stamp(a, "u_in")
    ACC = 96
    def frag_loads(rp, st):
        L = []
        ab = 0 if st == 0 else 32
        bb = 64 if st == 0 else 96
        for x in range(8):
            L.append(f"ds_read_b128 a[{bb+4*x}:{bb+4*x+3}], v34 offset:{512*x + 64*(3-rp)}")
            o = 64 * (3 - rp) + 512 * (7 - x)
            L.append(f"ds_read_b64 a[{ab+4*x}:{ab+4*x+1}], v33 offset:{o}")
            L.append(f"ds_read_b64 a[{ab+4*x+2}:{ab+4*x+3}], v33 offset:{o+8}")
        return L
    order = [(i, w) for x in range(8) for i in range(x + 1) for w in range(x + 1) if max(i, w) == x and i + w <= 7]
    pre = q_loads(R0) + dma_w1(0, R1) + dma_w1(1, R1) + dma_w1(2, R1)
    for l in frag_loads(0, 0): a(l)
    started = set()
    for rp in range(4):
        st = rp & 1
        a("s_waitcnt lgkmcnt(0)")
        nxt = frag_loads(rp + 1, st ^ 1) if rp < 3 else []
        ab = 0 if st == 0 else 32
        bb = 64 if st == 0 else 96
        for n, (i, w) in enumerate(order):
            tn = i + w
            acc = f"v[{ACC+4*tn}:{ACC+4*tn+3}]"
            c = acc if tn in started else "0"
            started.add(tn)
            a(f"{MF} {acc}, a[{ab+4*i}:{ab+4*i+3}], a[{bb+4*w}:{bb+4*w+3}], {c}")
            if n < len(nxt): a(nxt[n])
            if n % 5 == 2 and pre: vm.op(pre.pop(0), "pre")
    for l in pre: vm.op(l, "pre")
    stamp(a, "conv")
    a(f"s_lshl_b32 s56, s{S_WAVE}, 12\ns_add_u32 s56, s56, {L_RED}\nv_add_u32 v35, s56, v9")
    a(f"s_xor_b32 s57, s{S_WAVE}, 1\ns_lshl_b32 s57, s57, 12\ns_add_u32 s57, s57, {L_RED}\nv_add_u32 v36, s57, v9")
    lh1 = a.newlabel("L_h1"); lj = a.newlabel("L_join")
    a(f"s_cmp_eq_u32 s{SH}, 1\ns_cbranch_scc1 {lh1}")
    for t in range(4): a(f"ds_write_b128 v35, v[{ACC+16+4*t}:{ACC+16+4*t+3}] offset:{1024*t}")
    a(f"s_branch {lj}")
    a.label(lh1)
    for t in range(4): a(f"ds_write_b128 v35, v[{ACC+4*t}:{ACC+4*t+3}] offset:{1024*t}")
    for e in range(16): a(f"v_mov_b32 v{ACC+e}, v{ACC+16+e}")
    a.label(lj)
    a("v_lshlrev_b32 v10, 5, v2\nv_lshl_add_u32 v10, v3, 3, v10")
    a("s_add_u32 s56, s66, s68\ns_add_u32 s56, s56, 480\nv_add_u32 v37, s56, v10")
    EU = 40
    for t in range(4): a(f"ds_read_b64 v[{EU+2*t}:{EU+2*t+1}], v37 offset:{512*t}")
    a("s_waitcnt lgkmcnt(0)\ns_barrier")
    PR = 48
    for t in range(4): a(f"ds_read_b128 v[{PR+4*t}:{PR+4*t+3}], v36 offset:{1024*t}")
    a("v_lshlrev_b32 v140, 16, v140")
    a("v_and_b32 v11, 1, v3\nv_lshlrev_b32 v11, 9, v11\nv_lshl_add_u32 v11, v2, 5, v11\nv_lshrrev_b32 v12, 1, v3\nv_lshl_add_u32 v11, v12, 4, v11")
    a("s_waitcnt lgkmcnt(0)")
    O = 72
    for t in range(4):
        for hp in range(2):
            e = 4 * t + 2 * hp
            pk(a, "add", ACC + e, ACC + e, PR + e)
            unpack(a, 64 + 2*hp, 65 + 2*hp, EU + 2*t + hp)
            pk(a, "fma", ACC + e, 64 + 2*hp, 140, ACC + e, mods="op_sel_hi:[1,0,1]")
            a(f"v_cvt_pk_bf16_f32 v{O+2*t+hp}, v{ACC+e}, v{ACC+e+1}")
    for t in (0, 2):
        a(f"v_permlane16_swap_b32 v{O+2*t}, v{O+2*t+2}")
        a(f"v_permlane16_swap_b32 v{O+2*t+1}, v{O+2*t+3}")
        vm.op(f"buffer_store_dwordx4 v[{O+2*t}:{O+2*t+3}], v11, {sd(R3)}, s69 offen offset:{512*t} sc1", "y")
    stamp(a, "y_st")
    a(f"v_min_u32 v35, 20, v1\nv_lshlrev_b32 v35, 6, v35\nv_add_u32 v35, {F_M}, v35")
    vm.drain()
    poll(a, [35])
    a("s_barrier")
    a(f"s_lshl_b32 s57, s{S_X}, 5\ns_add_u32 s57, s57, s{S_SLOT}\ns_lshl_b32 s57, s57, 6")
    signal(a, 57, F_B, False)
    stamp(a, "fb")
    a(f"s_cmp_lt_u32 s{S_SLOT}, 28\ns_cbranch_scc1 L_win2")
    a(f"s_cmp_lg_u32 s2, 248\ns_cbranch_scc1 L_fin")
    a("v_lshlrev_b32 v35, 6, v1")
    a(f"v_add_u32 v35, {F_X}, v35\nv_add_u32 v36, 4096, v35\nv_add_u32 v37, 8192, v35")
    a("v_add_u32 v38, 192, v1\nv_and_b32 v39, 7, v38\nv_cmp_eq_u32 vcc, 7, v39\nv_mov_b32 v39, 224\nv_cmp_le_u32 s[60:61], v39, v38\ns_and_b64 vcc, vcc, s[60:61]")
    a(f"v_cndmask_b32 v38, v38, 0, vcc\nv_lshlrev_b32 v38, 6, v38\nv_add_u32 v38, {F_X}, v38")
    a(f"s_or_b32 s59, s{STAG+1}, 15\ns_mov_b32 s58, s{STAG}")
    poll(a, [35, 36, 37, 38], tagmask=True)
    lab = wave0(a)
    a(f"v_mov_b32 v250, {F_EPOCH}\nv_mov_b32 v252, s{STAG}\nv_mov_b32 v253, s{STAG+1}")
    a("s_mov_b64 exec, 1")
    a(f"buffer_store_dwordx2 v[252:253], v250, {sd(SFLG)}, 0 offen sc1")
    a("s_mov_b64 exec, -1")
    a.label(lab)
    a("s_branch L_fin")

def aux_role(a):
    vm = VM(a)
    lskip = a.newlabel("L_nomod")
    code_prefetch(a, vm)
    tag_and_publish(a)
    a(f"s_cmp_ge_u32 s{S_SLOT}, 21\ns_cbranch_scc1 {lskip}")
    SW, SC, SO = R0, R1, R2
    srd(a, SW, PWM, D * 6 * D * 2); srd(a, SC, PC, D * 2); srd(a, SO, PWS, 6 * D * 4, WS_MOD)
    a(f"s_lshl_b32 s56, s{S_SLOT}, 8")
    a("v_and_b32 v4, 15, v0\nv_lshrrev_b32 v5, 4, v0")
    a("v_mul_u32_u24 v6, 5376, v5\nv_lshl_add_u32 v6, v4, 4, v6\nv_add_u32 v6, s56, v6")
    a("v_lshlrev_b32 v7, 2, v0")
    a(f"buffer_load_dword v8, v7, {sd(SC)}, 0 offen")
    X = 16
    for i in range(28):
        a(f"s_mov_b32 s57, {i*16*5376}")
        a(f"buffer_load_dwordx4 v[{X+4*i}:{X+4*i+3}], v6, {sd(SW)}, s57 offen")
    a("s_waitcnt vmcnt(28)")
    unpack(a, 10, 11, 8)
    for r in (10, 11): a(f"v_mul_f32 v{r+2}, {hexf(-1.4426950408889634)}, v{r}")
    a("v_exp_f32 v12, v12\nv_exp_f32 v13, v13\nv_add_f32 v12, 1.0, v12\nv_add_f32 v13, 1.0, v13")
    a("v_rcp_f32 v12, v12\nv_rcp_f32 v13, v13\nv_mul_f32 v10, v10, v12\nv_mul_f32 v11, v11, v13")
    a("v_cvt_pk_bf16_f32 v14, v10, v11")
    unpack(a, 10, 11, 14)
    a("v_lshlrev_b32 v7, 3, v0")
    a("v_cmp_gt_u32 vcc, 224, v0\ns_and_saveexec_b64 s[58:59], vcc")
    a("ds_write_b64 v7, v[10:11]")
    a("s_mov_b64 exec, s[58:59]")
    a("s_waitcnt lgkmcnt(0)\ns_barrier")
    SCV = 128
    a("v_lshlrev_b32 v7, 2, v5")
    for i in range(28): a(f"ds_read_b32 v{SCV+i}, v7 offset:{64*i}")
    ACC = 160
    for e in range(8): a(f"v_mov_b32 v{ACC+e}, 0")
    a("s_waitcnt lgkmcnt(0)")
    for i in range(28):
        if i % 4 == 0: a(f"s_waitcnt vmcnt({max(0, 28 - i - 4)})")
        for e in range(4):
            t = 10 + 2 * (e & 1)
            unpack(a, t, t + 1, X + 4*i + e)
            sc = SCV + i
            if sc % 2 == 0: pk(a, "fma", ACC + 2*e, t, sc, ACC + 2*e, mods="op_sel_hi:[1,0,1]")
            else: pk(a, "fma", ACC + 2*e, t, sc - 1, ACC + 2*e, mods="op_sel:[0,1,0] op_sel_hi:[1,1,1]")
    a("v_lshlrev_b32 v7, 9, v5\nv_lshl_add_u32 v7, v4, 5, v7")
    a(f"ds_write_b128 v7, v[{ACC}:{ACC+3}] offset:2048")
    a(f"ds_write_b128 v7, v[{ACC+4}:{ACC+7}] offset:2064")
    a("s_waitcnt lgkmcnt(0)\ns_barrier")
    a("v_and_b32 v7, 127, v0\nv_lshlrev_b32 v7, 2, v7")
    for i in range(16): a(f"ds_read_b32 v{16+i}, v7 offset:{2048 + 512*i}")
    a("s_waitcnt lgkmcnt(0)")
    for i in range(1, 16): a(f"v_add_f32 v16, v16, v{16+i}")
    a(f"v_cvt_pk_bf16_f32 v17, v16, v16\nv_and_b32 v16, s{S_MASK}, v17")
    a(f"s_lshl_b32 s56, s{S_SLOT}, 9\nv_add_u32 v7, s56, v7")
    a("v_cmp_gt_u32 vcc, 128, v0\ns_and_saveexec_b64 s[58:59], vcc")
    l2 = a.newlabel("L_ms")
    a(f"s_cbranch_execz {l2}")
    a(f"buffer_store_dword v16, v7, {sd(SO)}, 0 offen sc1")
    a.label(l2)
    a("s_mov_b64 exec, s[58:59]")
    a("s_waitcnt vmcnt(0)\ns_barrier")
    a(f"s_lshl_b32 s57, s{S_SLOT}, 6")
    signal(a, 57, F_M, False)
    a.label(lskip)
    stamp(a, "mod")
    purity_check(a)
    dma_consts(a); ring_base(a)
    srd(a, R0, PQ, SZ_T); srd(a, R1, PW1, D * F * 2)
    for l in q_loads(R0) + dma_w1(0, R1) + dma_w1(1, R1) + dma_w1(2, R1): a(l)
    a(f"v_min_u32 v35, 20, v1\nv_lshlrev_b32 v35, 6, v35\nv_add_u32 v35, {F_M}, v35")
    a("s_waitcnt vmcnt(0)")
    poll(a, [35])
    a("s_waitcnt lgkmcnt(0)\ns_barrier")
    purity_fetch(a)

def tr_addr_nat(a, dst, sel, tmp):
    a(f"v_lshrrev_b32 v{tmp}, 2, v2")
    a(f"v_lshl_add_u32 v{dst}, v3, 3, v{tmp}")
    a(f"v_lshrrev_b32 v{tmp}, 1, v{tmp}")
    a(f"v_and_b32 v{tmp+1}, 1, v3\nv_lshl_or_b32 v{tmp}, v{tmp+1}, 1, v{tmp}")
    a(f"v_xor_b32 v{tmp}, {sel}, v{tmp}\nv_lshlrev_b32 v{tmp}, 5, v{tmp}")
    a(f"v_lshl_add_u32 v{dst}, v{dst}, 7, v{tmp}")
    a(f"v_and_b32 v{tmp}, 3, v2\nv_lshl_add_u32 v{dst}, v{tmp}, 3, v{dst}")
def tr_addr_old(a, dst, sel, tmp):
    a(f"v_lshrrev_b32 v{tmp}, 2, v2\nv_lshl_add_u32 v{dst}, v3, 2, v{tmp}")
    a(f"v_lshrrev_b32 v{tmp+1}, 1, v{dst}\nv_and_b32 v{tmp+1}, 3, v{tmp+1}")
    a(f"v_xor_b32 v{tmp+1}, {sel}, v{tmp+1}\nv_lshlrev_b32 v{tmp+1}, 5, v{tmp+1}")
    a(f"v_lshlrev_b32 v{dst}, 7, v{dst}\nv_add_u32 v{dst}, v{dst}, v{tmp+1}")
    a(f"v_and_b32 v{tmp}, 3, v2\nv_lshl_add_u32 v{dst}, v{tmp}, 3, v{dst}")

def ln_scalars(a, vs, vq, vneg):
    a(f"v_mul_f32 v{vs}, {hexf(1.0/448.0)}, v{vs}\nv_mul_f32 v{vq}, {hexf(1.0/448.0)}, v{vq}")
    a(f"v_fma_f32 v{vq}, -v{vs}, v{vs}, v{vq}\nv_max_f32 v{vq}, 0, v{vq}")
    a(f"v_add_f32 v{vq}, {hexf(1e-5)}, v{vq}\nv_rsq_f32 v{vq}, v{vq}")
    a(f"v_mul_f32 v{vneg}, -v{vs}, v{vq}".replace("v_mul_f32 v", "v_mul_f32_e64 v", 1))

def row_stats(a, frag0, ones, su, gr, idx):
    for ks in range(14):
        r = frag0 + 4 * ks
        a(f"{MF} v[{su}:{su+3}], v[{ones}:{ones+3}], v[{r}:{r+3}], {'0' if ks == 0 else f'v[{su}:{su+3}]'}")
        a(f"{MF} v[{gr}:{gr+3}], v[{r}:{r+3}], v[{r}:{r+3}], {'0' if ks == 0 else f'v[{gr}:{gr+3}]'}")
    a(f"v_cndmask_b32 v{gr}, v{gr}, v{gr+1}, s[64:65]")
    a(f"v_cndmask_b32 v{gr}, v{gr}, v{gr+2}, s[66:67]")
    a(f"v_cndmask_b32 v{gr}, v{gr}, v{gr+3}, s[68:69]")
    a(f"ds_bpermute_b32 v{gr+1}, v{idx}, v{gr}")
    a("s_waitcnt lgkmcnt(0)")

def mlp_role(a):
    vm = VM(a)
    a.label("L_win2")
    srd(a, R2, PWS, 6 * D * 4, WS_MOD)
    a("v_lshlrev_b32 v4, 4, v0")
    MV = 208
    for n, row in enumerate((0, 1, 2, 3, 4)):
        a(f"s_movk_i32 s56, {row*448*4}")
        vm.op(f"buffer_load_dwordx4 v[{MV+4*n}:{MV+4*n+3}], v4, {sd(R2)}, s56 offen sc1", "mod")
    for ks in (3, 4, 5):
        for l in dma_w1(ks, R1): vm.op(l, f"w1_{ks}")
    for ft in range(4):
        tr_addr_nat(a, 12 + ft, str(ft), 16)
        a(f"v_add_u32 v{12+ft}, s{S_RING}, v{12+ft}")
    def w1_reads(ks):
        so = (ks % NSLOT) * 4096
        L = []
        for x in range(4):
            L.append(f"ds_read_b64_tr_b16 a[{16*ks+4*x}:{16*ks+4*x+1}], v{12+x} offset:{so}")
            L.append(f"ds_read_b64_tr_b16 a[{16*ks+4*x+2}:{16*ks+4*x+3}], v{12+x} offset:{so+512}")
        return L
    for ks in range(3):
        for l in w1_reads(ks): a(l)
    a("v_mov_b32 v16, 0x3f803f80\nv_mov_b32 v17, v16\nv_mov_b32 v18, v16\nv_mov_b32 v19, v16")
    a("v_and_b32 v20, 3, v0")
    a("v_cmp_eq_u32 s[64:65], 1, v20\nv_cmp_eq_u32 s[66:67], 2, v20\nv_cmp_eq_u32 s[68:69], 3, v20")
    a("v_lshrrev_b32 v20, 2, v2\nv_lshl_add_u32 v20, v20, 4, v2\nv_lshlrev_b32 v20, 2, v20")
    row_stats(a, QF, 16, 24, 28, 20)
    a("v_mov_b32 v8, v24\nv_mov_b32 v10, v29")
    ln_scalars(a, 8, 10, 6)
    for ks in (6, 7, 8):
        for l in dma_w1(ks, R1): vm.op(l, f"w1_{ks}")
    vm.wait("mod")
    for e in range(4):
        a(f"v_add_f32 v{MV+4+e}, 1.0, v{MV+4+e}\nv_add_f32 v{MV+16+e}, 1.0, v{MV+16+e}")
    for e in (0, 2):
        pk(a, "mul", MV + 4 + e, MV + 4 + e, MV + 8 + e)
        pk(a, "mul", MV + e, MV + e, MV + 8 + e)
    a("v_cmp_gt_u32 vcc, 112, v0\ns_and_saveexec_b64 s[58:59], vcc")
    a(f"ds_write_b128 v4, v[{MV+4}:{MV+7}] offset:{L_XT}")
    a(f"ds_write_b128 v4, v[{MV}:{MV+3}] offset:{L_XT + 1792}")
    a(f"ds_write_b128 v4, v[{MV+16}:{MV+19}] offset:{L_TAB}")
    a(f"ds_write_b128 v4, v[{MV+12}:{MV+15}] offset:{L_TAB + 1792}")
    a("s_mov_b64 exec, s[58:59]")
    a("s_waitcnt lgkmcnt(0)\ns_barrier")
    stamp(a, "tab")
    a("v_lshlrev_b32 v21, 5, v3")
    TB = [208, 224]
    def tab_reads(ks, base):
        t = TB[ks & 1]; o = base + 128 * ks
        return [f"ds_read_b128 v[{t}:{t+3}], v21 offset:{o}", f"ds_read_b128 v[{t+4}:{t+7}], v21 offset:{o+16}",
                f"ds_read_b128 v[{t+8}:{t+11}], v21 offset:{o+1792}", f"ds_read_b128 v[{t+12}:{t+15}], v21 offset:{o+1792+16}"]
    def g_step(ks):
        t = TB[ks & 1]
        for e in range(4):
            g = GF + 8 * ks + 2 * e
            unpack(a, g, g + 1, QF + 4 * ks + e)
            pk(a, "fma", g, g, 10, 6, mods="op_sel_hi:[1,0,0]")
            pk(a, "fma", g, g, t + 2 * e, t + 8 + 2 * e)
    for l in tab_reads(0, L_XT): a(l)
    for ks in range(14):
        if ks < 13:
            for l in tab_reads(ks + 1, L_XT): a(l)
        kw = ks + 3
        if kw < 14:
            vm.wait(f"w1_{kw}")
            for l in w1_reads(kw): a(l)
        nl = (4 if ks < 13 else 0) + (8 if kw < 14 else 0)
        a(f"s_waitcnt lgkmcnt({nl})")
        g_step(ks)
        if kw < 14 and kw + NSLOT < 14 and kw >= 3:
            a("s_waitcnt lgkmcnt(0)")
            for l in dma_w1(kw + NSLOT, R1): vm.op(l, f"w1_{kw+NSLOT}")
    stamp(a, "g")
    srd(a, R0, PWS, SZ_T, WS_YT); srd(a, R1, PW2, D * F * 2); srd(a, R3, PWS, SZ_H, WS_H)
    a("v_min_u32 v4, 55, v1\nv_lshlrev_b32 v4, 6, v4")
    a(f"v_add_u32 v4, {F_B}, v4\nv_add_u32 v5, {56*64}, v4\nv_add_u32 v7, {2*56*64}, v4\nv_add_u32 v8, {3*56*64}, v4")
    a(f"s_lshl_b32 s56, s{S_I}, 7\nv_lshlrev_b32 v9, 12, v{V_DMA_LROW}\nv_add_u32 v9, s56, v9")
    a("v_xor_b32 v11, 64, v201\nv_add_u32 v11, v9, v11\nv_add_u32 v9, v9, v201")
    vm.drain()
    a("s_waitcnt lgkmcnt(0)")
    poll(a, [4, 5, 7, 8])
    a("s_barrier")
    stamp(a, "s2")
    a(f"s_mul_i32 s56, s{S_WAVE}, 14\ns_lshl_b32 s57, s56, 15\ns_lshl_b32 s58, s56, 10")
    for n in range(14):
        a(f"s_add_u32 m0, s58, {L_XT + 1024*n}\ns_add_u32 s59, s57, {32768*n}")
        vm.op(f"buffer_load_dwordx4 v{9 if n % 2 == 0 else 11}, {sd(R0)}, s59 offen sc1 lds", "y")
    a(f"s_mul_i32 s60, s{S_I}, 56\ns_lshl_b32 s61, s{S_J}, 3\ns_add_u32 s61, s60, s61\ns_lshl_b32 s59, s{S_WAVE}, 1\ns_add_u32 s61, s61, s59\ns_lshl_b32 s61, s61, 12")
    if cfg.pretouch:
        a("v_lshlrev_b32 v4, 7, v1")
        vm.op(f"buffer_load_dword v254, v4, {sd(R3)}, s61 offen sc1", "pt")
    a(f"v_and_b32 v205, 7, v1\nv_lshlrev_b32 v206, 1, v3\nv_xor_b32 v205, v205, v206\nv_lshlrev_b32 v205, 4, v205")
    a(f"v_mul_u32_u24 v{V_W1A}, 896, v{V_DMA_LROW}\nv_add_u32 v{V_W1A}, v{V_W1A}, v205\ns_lshl_b32 s56, s{S_J}, 7\nv_add_u32 v{V_W1A}, s56, v{V_W1A}")
    a(f"s_mul_i32 s62, s{S_WAVE}, {14*32*896}")
    def dma_w2(n):
        L = []
        for qq in range(4):
            L.append(f"s_add_u32 m0, s{S_RING}, {(n % NSLOT)*4096 + 1024*qq}\ns_add_u32 s71, s62, {(32*n + 8*qq)*896}\n"
                     f"buffer_load_dwordx4 v{V_W1A}, {sd(R1)}, s71 offen lds")
        return L
    tr_addr_nat(a, 4, f"s{S_WAVE}", 16)
    vm.wait("y")
    a("s_barrier")
    stamp(a, "y_in")
    YB = [208, 212]
    def y_reads(ks):
        y = YB[ks & 1]
        return [f"ds_read_b64_tr_b16 v[{y}:{y+1}], v4 offset:{4096*ks}", f"ds_read_b64_tr_b16 v[{y+2}:{y+3}], v4 offset:{4096*ks+512}"]
    w2q = [l for n in range(NSLOT) for l in dma_w2(n)]
    w2tags = [f"w2_{n}" for n in range(NSLOT) for _ in range(4)]
    for l in y_reads(0): a(l)
    for ks in range(14):
        if ks < 13:
            for l in y_reads(ks + 1): a(l)
        a(f"s_waitcnt lgkmcnt({2 if ks < 13 else 0})")
        y = YB[ks & 1]
        for e in range(4):
            g = GF + 8 * ks + 2 * e
            unpack(a, 216, 217, y + e)
            unpack(a, 218, 219, QF + 4 * ks + e)
            pk(a, "fma", g, g, 216, 218)
            a(f"v_cvt_pk_bf16_f32 v{QF+4*ks+e}, v{g}, v{g+1}")
        for _ in range(2):
            if w2q: vm.op(w2q.pop(0), w2tags.pop(0))
    while w2q: vm.op(w2q.pop(0), w2tags.pop(0))
    a("v_mov_b32 v16, 0x3f803f80\nv_mov_b32 v17, v16\nv_mov_b32 v18, v16\nv_mov_b32 v19, v16")
    row_stats(a, QF, 16, 24, 28, 20)
    a("v_mov_b32 v8, v24\nv_mov_b32 v10, v29")
    ln_scalars(a, 8, 10, 6)
    a("s_barrier")
    stamp(a, "p1")
    a(f"s_mul_i32 s56, s{S_WAVE}, {14*1024}\nv_lshlrev_b32 v5, 4, v1\nv_add_u32 v7, s56, v5")
    for l in tab_reads(0, L_TAB): a(l)
    for ks in range(14):
        if ks < 13:
            for l in tab_reads(ks + 1, L_TAB): a(l)
            a(f"s_waitcnt lgkmcnt({4 if ks == 0 else 5})")
        else:
            a("s_waitcnt lgkmcnt(1)")
        t = TB[ks & 1]
        o = 240 + 4 * (ks & 1)
        for e in range(4):
            g = GF + 8 * ks + 2 * e
            pk(a, "fma", g, g, 10, 6, mods="op_sel_hi:[1,0,0]")
            pk(a, "fma", g, g, t + 2 * e, t + 8 + 2 * e)
            a(f"v_cvt_pk_bf16_f32 v{o+e}, v{g}, v{g+1}")
        a(f"ds_write_b128 v7, v[{o}:{o+3}] offset:{L_XT + 1024*ks}")
    RES = 232
    a(f"s_lshl_b32 s56, s{S_J}, 3")
    a("s_set_gpr_idx_on s56, gpr_idx(SRC0)")
    for e in range(8): a(f"v_mov_b32 v{RES+e}, v{QF+e}")
    a("s_set_gpr_idx_off")
    for nt in range(4):
        tr_addr_old(a, 12 + nt, str(nt), 16)
        a(f"v_add_u32 v{12+nt}, s{S_RING}, v{12+nt}")
    a("s_waitcnt lgkmcnt(0)\ns_barrier")
    stamp(a, "p2")
    ACC = 32
    BF = [96, 112]
    def b_reads(ks):
        return [f"ds_read_b128 v[{BF[ks & 1]+4*x}:{BF[ks & 1]+4*x+3}], v5 offset:{L_XT + (x*14 + ks)*1024}" for x in range(4)]
    def w2_reads(n):
        so = (n % NSLOT) * 4096
        L = []
        for x in range(4):
            L.append(f"ds_read_b64_tr_b16 a[{16*n+4*x}:{16*n+4*x+1}], v{12+x} offset:{so}")
            L.append(f"ds_read_b64_tr_b16 a[{16*n+4*x+2}:{16*n+4*x+3}], v{12+x} offset:{so+2048}")
        return L
    for l in b_reads(0): a(l)
    for ks in range(14):
        a("s_waitcnt lgkmcnt(0)")
        extra = []
        if ks >= 2 and ks - 2 + NSLOT < 14:
            extra += [("vm", l, f"w2_{ks-2+NSLOT}") for l in dma_w2(ks - 2 + NSLOT)]
        if ks < 13: extra += [("i", l, None) for l in b_reads(ks + 1)]
        if ks >= 1:
            extra.append(("w", None, f"w2_{ks-1}"))
            extra += [("i", l, None) for l in w2_reads(ks - 1)]
        n = 0
        for ft in range(4):
            for tt in range(4):
                acc = f"v[{ACC+4*(4*ft+tt)}:{ACC+4*(4*ft+tt)+3}]"
                st = BF[ks & 1]
                a(f"{MF} {acc}, a[{16*ks+4*ft}:{16*ks+4*ft+3}], v[{st+4*tt}:{st+4*tt+3}], {'0' if ks == 0 else acc}")
                for _ in range(2 if n < 2 else 1):
                    if extra:
                        k, l, tg = extra.pop(0)
                        if k == "vm": vm.op(l, tg)
                        elif k == "w": vm.wait(tg)
                        else: a(l)
                n += 1
        while extra:
            k, l, tg = extra.pop(0)
            if k == "vm": vm.op(l, tg)
            elif k == "w": vm.wait(tg)
            else: a(l)
    stamp(a, "g1")
    vm.wait("w2_13")
    for l in w2_reads(13): a(l)
    a(f"s_mov_b32 s64, {hexf(-1.4426950408889634)}\ns_mov_b32 s65, s64")
    HO = 96
    X, E = 128, 130
    for kl in range(2):
        for tt in range(4):
            o = HO + 4 * (kl * 4 + tt)
            for e in range(4):
                x = ACC + 4 * (4 * (2 * kl + (e >> 1)) + tt) + 2 * (e & 1)
                E = 128 + 2 * (e & 1)
                a(f"v_pk_mul_f32 v[{E}:{E+1}], v[{x}:{x+1}], s[64:65]")
                a(f"v_exp_f32 v{E}, v{E}\nv_exp_f32 v{E+1}, v{E+1}")
                a(f"v_pk_add_f32 v[{E}:{E+1}], v[{E}:{E+1}], 1.0 op_sel_hi:[1,0]")
                a(f"v_rcp_f32 v{E}, v{E}\nv_rcp_f32 v{E+1}, v{E+1}")
                pk(a, "mul", E, E, x)
                a(f"v_cvt_pk_bf16_f32 v{o+e}, v{E}, v{E+1}")
    lg = a.newlabel("L_hg"); ld = a.newlabel("L_hd")
    a(f"s_cmp_eq_u32 s{S_PURE}, 0\ns_cbranch_scc1 {lg}")
    for pol, nxt in (("", ld), ("sc1", None)):
        for fr in range(8):
            a(f"s_add_u32 s59, s61, {fr*1024}")
            a(f"buffer_store_dwordx4 v[{HO+4*fr}:{HO+4*fr+3}], v5, {sd(R3)}, s59 offen {pol}")
        if nxt:
            a(f"s_branch {nxt}")
            a.label(lg)
    a.label(ld)
    stamp(a, "h_st")
    vm.drain()
    a("s_waitcnt lgkmcnt(0)\ns_barrier")
    a(f"s_mul_i32 s57, s{S_I}, 7\ns_add_u32 s57, s57, s{S_J}\ns_lshl_b32 s57, s57, 6")
    signal(a, 57, F_C, True)
    a(f"v_min_u32 v4, 6, v1\ns_mul_i32 s56, s{S_I}, 7\nv_add_u32 v4, s56, v4\nv_lshlrev_b32 v4, 6, v4\nv_add_u32 v4, {F_C}, v4")
    poll(a, [4])
    a("s_barrier")
    stamp(a, "s3")
    a(f"s_mul_i32 s58, s{S_WAVE}, 14\ns_add_u32 s60, s60, s58\ns_lshl_b32 s60, s60, 12")
    HB = 96; DEP = 8
    def h_loads(n):
        sl = n % DEP
        return [f"s_add_u32 s59, s60, {n*4096 + 1024*tt}\n"
                f"buffer_load_dwordx4 v[{HB+16*sl+4*tt}:{HB+16*sl+4*tt+3}], v5, {sd(R3)}, s59 offen sc1" for tt in range(4)]
    for n in range(DEP):
        for l in h_loads(n): vm.op(l, f"h{n}")
    for n in range(14):
        vm.wait(f"h{n}")
        sl = n % DEP
        for nt in range(4):
            for tt in range(4):
                acc = f"v[{ACC+4*(4*nt+tt)}:{ACC+4*(4*nt+tt)+3}]"
                a(f"{MF} {acc}, a[{16*n+4*nt}:{16*n+4*nt+3}], v[{HB+16*sl+4*tt}:{HB+16*sl+4*tt+3}], {'0' if n == 0 else acc}")
        if n + DEP < 14:
            for l in h_loads(n + DEP): vm.op(l, f"h{n+DEP}")
    stamp(a, "g2")
    srd(a, R2, PWS, 6 * D * 4, WS_MOD); srd(a, R0, POUT, SZ_T)
    a(f"s_lshl_b32 s56, s{S_J}, 8\ns_add_u32 s56, s56, {5*448*4}\nv_lshlrev_b32 v7, 5, v3\nv_add_u32 v7, s56, v7")
    GB = 208
    for ps in range(2):
        vm.op(f"buffer_load_dwordx4 v[{GB+8*ps}:{GB+8*ps+3}], v7, {sd(R2)}, 0 offen offset:{128*ps} sc1", "gb")
        vm.op(f"buffer_load_dwordx4 v[{GB+8*ps+4}:{GB+8*ps+7}], v7, {sd(R2)}, 0 offen offset:{128*ps+16} sc1", "gb")
    a(f"v_mul_u32_u24 v8, 272, v2\nv_lshl_add_u32 v9, v3, 4, v8\nv_add_u32 v9, s{S_RING}, v9")
    for nt in range(4):
        for tt in range(4):
            r = ACC + 4 * (4 * nt + tt)
            a(f"ds_write_b128 v9, v[{r}:{r+3}] offset:{tt*4352 + 64*nt}")
    a(f"s_mul_i32 s56, s{S_WAVE}, {16*272}\ns_add_u32 s56, s56, {L_RING}")
    a("v_lshl_add_u32 v10, v3, 5, v8\nv_add_u32 v10, s56, v10")
    a(f"v_add_u32 v11, {2*RSTR}, v10")
    a(f"s_lshl_b32 s56, s{S_I}, 6\ns_lshl_b32 s57, s{S_WAVE}, 4\ns_add_u32 s56, s56, s57\ns_mul_i32 s56, s56, 896\ns_lshl_b32 s57, s{S_J}, 7\ns_add_u32 s56, s56, s57")
    a("v_mul_u32_u24 v12, 896, v2\nv_lshl_add_u32 v12, v3, 4, v12\nv_add_u32 v12, s56, v12")
    a("s_waitcnt lgkmcnt(0)\ns_barrier")
    P = 96
    for ps in range(2):
        for w in range(4):
            for hh in range(2):
                r = P + 32 * ps + 8 * w + 4 * hh
                a(f"ds_read_b128 v[{r}:{r+3}], v{10 if w < 2 else 11} offset:{(w & 1)*RSTR + 128*ps + 16*hh}")
    vm.wait("gb")
    a("s_waitcnt lgkmcnt(0)")
    for ps in range(2):
        b = P + 32 * ps
        for e in range(4):
            x = b + 2 * e
            pk(a, "add", x, x, x + 8)
            pk(a, "add", x + 16, x + 16, x + 24)
            pk(a, "add", x, x, x + 16)
            unpack(a, 160, 161, RES + 4 * ps + e)
            pk(a, "fma", x, x, GB + 8 * ps + 2 * e, 160)
            a(f"v_cvt_pk_bf16_f32 v{164+4*ps+e}, v{x}, v{x+1}")
        a(f"buffer_store_dwordx4 v[{164+4*ps}:{164+4*ps+3}], v12, {sd(R0)}, 0 offen offset:{64*ps}")
    stamp(a, "end")

def gen(a):
    prologue(a)
    a(f"s_cmp_eq_u32 s{S_X}, 7\ns_cbranch_scc1 L_aux")
    main_role(a)
    a.label("L_aux")
    aux_role(a)
    mlp_role(a)
    a.label("L_fin")
    stamp_flush(a)
    a.label("L_end")

def build():
    hdr = open("cdna_kernels/" + NAME + ".s.ref").read().split("; Override launch")[0]
    a = Asm(); gen(a); n = a.hazards()
    label = NAME + "_kernel"
    out = hdr + f"; @launch grid=(256,1,1) block=(256,1,1) lds={LDS_BYTES}\n"
    out += f""".amdgcn_target "amdgcn-amd-amdhsa--gfx950"
.text
.globl {label}
.p2align 8
.type {label},@function
{label}:
{a.text()}
    s_endpgm
L_code_end:
.section .rodata,"a"
.p2align 6
.amdhsa_kernel {label}
  .amdhsa_next_free_vgpr 512
  .amdhsa_next_free_sgpr 100
  .amdhsa_accum_offset 256
  .amdhsa_group_segment_fixed_size 0
  .amdhsa_kernarg_size 112
  .amdhsa_user_sgpr_count 2
  .amdhsa_user_sgpr_kernarg_segment_ptr 1
  .amdhsa_system_sgpr_workgroup_id_x 1
.end_amdhsa_kernel
"""
    return out

if __name__ == "__main__":
    import argparse
    ap = argparse.ArgumentParser()
    ap.add_argument("out"); ap.add_argument("--stamps", default=""); ap.add_argument("--nocpf", action="store_true")
    ap.add_argument("--nopt", action="store_true"); ap.add_argument("--glob", action="store_true")
    g = ap.parse_args()
    if g.stamps: cfg.stamps = {n: i for i, n in enumerate(g.stamps.split(","))}
    cfg.code_prefetch = not g.nocpf; cfg.pretouch = not g.nopt; cfg.force_global = g.glob
    t = build()
    open(g.out, "w").write(t)
    print("written", len(t), "bytes,", t.count("\n"), "lines")
```

```python
import sys, struct
sys.path.insert(0, "dev")
from asmgen import Asm

NAME = "adaLN_cond__ssm_conv_h3__dense_activation_silu__prompt"
S, D, F = 2048, 448, 1792
SZ_T = D * S * 2
SZ_H = S * F * 2
PQ, PK, PV, PSH, PKF, PD, PBX, PW1, PW2, PC, PWM, POUT, PDBG, PWS = 4, 6, 8, 10, 12, 14, 16, 18, 20, 22, 24, 26, 28, 30
WS_KVT, WS_YT, WS_MOD, WS_FLG, WS_H = 0x000000, 0x200000, 0x400000, 0x410000, 0x800000
F_EPOCH, F_X, F_A, F_M, F_B, F_C, F_SIZE = 0x0, 0x1000, 0x5000, 0x9000, 0xA000, 0xE000, 0x12000
STAMP_WS = 0x1800000
R0, R1, R2, R3, R4 = 32, 36, 40, 44, 48
SFLG = 52
T0 = 56
STAG = 88; S_MASK = 90; S_WAVE = 91; S_X = 92; S_SLOT = 93; S_PURE = 94; S_I = 95; S_J = 96; S_XCC = 97; S_T1 = 98; S_T2 = 99
MF = "v_mfma_f32_16x16x32_bf16"
SPIN = 1 << 17

class Cfg:
    stamps = None
    code_prefetch = True
    pretouch = True
    force_global = False
    cyc = False
cfg = Cfg()

def f32bits(x): return struct.unpack("<I", struct.pack("<f", x))[0]
def hexf(x): return "0x%08x" % f32bits(x)

def srd(a, r, lo, size, add=0):
    if isinstance(add, str):
        a(f"s_add_u32 s{r}, s{lo}, {add}\ns_addc_u32 s{r+1}, s{lo+1}, 0")
    elif add == 0:
        a(f"s_mov_b32 s{r}, s{lo}\ns_mov_b32 s{r+1}, s{lo+1}")
    else:
        a(f"s_add_u32 s{r}, s{lo}, {add}\ns_addc_u32 s{r+1}, s{lo+1}, 0")
    a(f"s_mov_b32 s{r+2}, {size}\ns_mov_b32 s{r+3}, 0x20000")
def sd(r): return f"s[{r}:{r+3}]"

def unpack(a, dlo, dhi, src):
    a(f"v_lshlrev_b32 v{dlo}, 16, v{src}")
    a(f"v_and_b32 v{dhi}, s{S_MASK}, v{src}")
def pk(a, op, d, x, y, z=None, mods=""):
    if z is None: a(f"v_pk_{op}_f32 v[{d}:{d+1}], v[{x}:{x+1}], v[{y}:{y+1}] {mods}")
    else: a(f"v_pk_{op}_f32 v[{d}:{d+1}], v[{x}:{x+1}], v[{y}:{y+1}], v[{z}:{z+1}] {mods}")

class VM:
    def __init__(self, a): self.a = a; self.q = []
    def op(self, text, tag=None):
        self.a(text); self.q.append(tag)
    def wait(self, tag):
        idx = max(i for i, t in enumerate(self.q) if t == tag)
        n = len(self.q) - 1 - idx
        self.a(f"s_waitcnt vmcnt({min(n, 63)})")
    def drain(self):
        self.a("s_waitcnt vmcnt(0)"); self.q = []

def stamp(a, name):
    if cfg.stamps and name in cfg.stamps:
        j = cfg.stamps[name]
        a(f"{'s_memtime' if cfg.cyc else 's_memrealtime'} s[{72+2*j}:{73+2*j}]")
def stamp_flush(a):
    if not cfg.stamps: return
    lab = a.newlabel("L_st")
    a("s_waitcnt lgkmcnt(0)")
    a(f"s_cmp_lg_u32 s{S_WAVE}, 0\ns_cbranch_scc1 {lab}")
    a(f"s_add_u32 s56, s{PWS}, {STAMP_WS}\ns_addc_u32 s57, s{PWS+1}, 0")
    a("s_lshl_b32 s58, s2, 6\ns_add_u32 s56, s56, s58\ns_addc_u32 s57, s57, 0")
    a("v_mov_b32 v4, 0")
    for j in range(8):
        a(f"v_mov_b32 v5, s{72+2*j}")
        a(f"global_store_dword v4, v5, s[56:57] offset:{4*j}")
    a.label(lab)

def wave0(a):
    lab = a.newlabel("L_w0")
    a(f"s_cmp_lg_u32 s{S_WAVE}, 0\ns_cbranch_scc1 {lab}")
    return lab

def signal(a, off_sgpr, const, local):
    lab = wave0(a)
    a(f"s_add_u32 s56, s{off_sgpr}, {const}")
    a(f"v_mov_b32 v250, s56\nv_mov_b32 v252, s{STAG}\nv_mov_b32 v253, s{STAG+1}")
    a("s_mov_b64 exec, 1")
    if local:
        l2 = a.newlabel("L_sg"); l3 = a.newlabel("L_sd")
        a(f"s_cmp_eq_u32 s{S_PURE}, 0\ns_cbranch_scc1 {l2}")
        a(f"buffer_store_dwordx2 v[252:253], v250, {sd(SFLG)}, 0 offen")
        a(f"s_branch {l3}")
        a.label(l2)
        a(f"buffer_store_dwordx2 v[252:253], v250, {sd(SFLG)}, 0 offen sc1")
        a.label(l3)
    else:
        a(f"buffer_store_dwordx2 v[252:253], v250, {sd(SFLG)}, 0 offen sc1")
    a("s_mov_b64 exec, -1")
    a.label(lab)

def poll(a, addr_regs, tagmask=False):
    lab = wave0(a)
    loop = a.newlabel("L_poll"); done = a.newlabel("L_pdone")
    a(f"s_mov_b32 s56, 0")
    a.label(loop)
    for n, r in enumerate(addr_regs):
        a(f"buffer_load_dwordx2 v[{240+2*n}:{241+2*n}], v{r}, {sd(SFLG)}, 0 offen sc1")
    a("s_waitcnt vmcnt(0)")
    for n, r in enumerate(addr_regs):
        if tagmask:
            a(f"v_or_b32 v{241+2*n}, 15, v{241+2*n}")
        if n == 0:
            a(f"v_cmp_ne_u64 vcc, s[{STAG}:{STAG+1}], v[240:241]" if not tagmask else f"v_cmp_ne_u64 vcc, s[58:59], v[240:241]")
        else:
            a(f"v_cmp_ne_u64 s[60:61], s[{STAG}:{STAG+1}], v[{240+2*n}:{241+2*n}]" if not tagmask else f"v_cmp_ne_u64 s[60:61], s[58:59], v[{240+2*n}:{241+2*n}]")
            a("s_or_b64 vcc, vcc, s[60:61]")
    a(f"s_cmp_eq_u64 vcc, 0\ns_cbranch_scc1 {done}")
    a(f"s_add_u32 s56, s56, 1\ns_cmp_lt_u32 s56, {SPIN}\ns_cbranch_scc1 {loop}")
    a.label(done)
    a.label(lab)

L_KC, L_CSTR, L_CH = 0, 4160, 16640
L_U, L_USTR = 33280, 4608
L_RED = L_U + 2 * L_USTR
L_XT, L_TAB, L_RING, NSLOT = 0, 57344, 60928, 6
RSTR = NSLOT * 4096
LDS_BYTES = L_RING + 4 * RSTR + 4096

QF = 144
GF = 32
V_DMA_LROW = 200
V_W1A, V_W1B = 202, 203
V_QOFF = 204
V_QRD = 206
def slot1(ks): return (ks + 4) % NSLOT

def prologue(a):
    if cfg.code_prefetch: a("s_getpc_b64 s[62:63]")
    a("s_load_dwordx16 s[4:19], s[0:1], 0\ns_load_dwordx8 s[20:27], s[0:1], 64\ns_load_dwordx4 s[28:31], s[0:1], 96")
    if cfg.stamps:
        for j in range(8): a(f"s_mov_b32 s{72+2*j}, 0")
    stamp(a, "start")
    a(f"v_readfirstlane_b32 s{S_WAVE}, v0")
    a(f"s_mov_b32 s{S_MASK}, 0xffff0000")
    a(f"s_and_b32 s{S_X}, s2, 7\ns_lshr_b32 s{S_SLOT}, s2, 3")
    a(f"s_lshr_b32 s{S_WAVE}, s{S_WAVE}, 6")
    a("s_cmp_ge_u32 s2, 256\ns_cbranch_scc1 L_end")
    a(f"s_cmp_eq_u32 s{S_X}, 7\ns_cselect_b32 s56, 28, 32\ns_cmp_ge_u32 s{S_SLOT}, s56\ns_cbranch_scc1 L_end")
    a(f"s_getreg_b32 s{S_XCC}, hwreg(HW_REG_XCC_ID, 0, 4)")
    a("v_and_b32 v1, 63, v0\nv_and_b32 v2, 15, v0\nv_bfe_u32 v3, v0, 4, 2")
    a(f"s_mul_hi_u32 s56, s{S_SLOT}, {(2**32 + 6)//7}")
    a(f"s_mul_i32 s57, s56, 7\ns_sub_u32 s{S_J}, s{S_SLOT}, s57")
    a(f"s_min_u32 s56, s56, 3\ns_lshl_b32 s{S_I}, s{S_X}, 2\ns_add_u32 s{S_I}, s{S_I}, s56")
    a("s_waitcnt lgkmcnt(0)")
    srd(a, SFLG, PWS, F_SIZE, WS_FLG)
    a(f"s_add_u32 s56, s{PWS}, {WS_FLG}\ns_addc_u32 s57, s{PWS+1}, 0")
    a(f"s_load_dwordx2 s[{STAG}:{STAG+1}], s[56:57], {F_EPOCH}")

def code_prefetch(a, vm):
    if not cfg.code_prefetch: return
    a("s_sub_u32 s64, s62, 4\ns_subb_u32 s65, s63, 0\ns_mov_b32 s66, (L_code_end - %s_kernel)\ns_mov_b32 s67, 0x20000" % NAME)
    a(f"s_lshl_b32 s56, s{S_SLOT}, 10\ns_lshl_b32 s57, s{S_WAVE}, 8\ns_add_u32 s56, s56, s57")
    a("v_and_b32 v238, 1, v1\nv_lshlrev_b32 v238, 7, v238\nv_add_u32 v238, s56, v238")
    a("s_mov_b64 exec, 3")
    a("buffer_load_dword v239, v238, s[64:67], 0 offen")
    a("s_mov_b64 exec, -1")
    vm.q.append("cpf")

def tag_and_publish(a):
    a("s_waitcnt lgkmcnt(0)")
    a(f"s_add_u32 s{STAG}, s{STAG}, 1\ns_addc_u32 s{STAG+1}, s{STAG+1}, 0")
    lab = wave0(a)
    a(f"s_andn2_b32 s56, s{STAG+1}, 15\ns_or_b32 s56, s56, s{S_XCC}")
    a(f"s_lshl_b32 s57, s2, 6\ns_add_u32 s57, s57, {F_X}")
    a(f"v_mov_b32 v250, s57\nv_mov_b32 v252, s{STAG}\nv_mov_b32 v253, s56")
    a("s_mov_b64 exec, 1")
    a(f"buffer_store_dwordx2 v[252:253], v250, {sd(SFLG)}, 0 offen sc1")
    a("s_mov_b64 exec, -1")
    a.label(lab)

def purity_check(a):
    lab = wave0(a)
    loop = a.newlabel("L_px"); done = a.newlabel("L_pxd"); first = a.newlabel("L_pxf")
    a(f"s_or_b32 s59, s{STAG+1}, 15\ns_mov_b32 s58, s{STAG}")
    a(f"s_mov_b32 s56, 0\ns_branch {first}")
    a.label(loop)
    a(f"buffer_load_dwordx2 v[240:241], v244, {sd(SFLG)}, 0 offen sc1")
    a("s_waitcnt vmcnt(0)")
    a.label(first)
    a("v_or_b32 v243, 15, v241\nv_mov_b32 v242, v240")
    a("v_cmp_ne_u64 vcc, s[58:59], v[242:243]")
    a(f"s_cmp_eq_u64 vcc, 0\ns_cbranch_scc1 {done}")
    a(f"s_add_u32 s56, s56, 1\ns_cmp_lt_u32 s56, {SPIN}\ns_cbranch_scc1 {loop}")
    a.label(done)
    a("v_and_b32 v241, 15, v241")
    a(f"v_cmp_ne_u32 vcc, s{S_XCC}, v241")
    a(f"s_cmp_eq_u64 vcc, 0\ns_cselect_b32 s57, 1, 0")
    a(f"s_cmp_lt_u32 s56, {SPIN}\ns_cselect_b32 s57, s57, 0")
    if cfg.force_global: a("s_mov_b32 s57, 0")
    a(f"v_mov_b32 v240, s57\nv_mov_b32 v241, {LDS_BYTES - 16}")
    a("ds_write_b32 v241, v240")
    a("s_waitcnt lgkmcnt(0)")
    a.label(lab)

def purity_fetch(a):
    a(f"v_mov_b32 v241, {LDS_BYTES - 16}")
    a("ds_read_b32 v240, v241")
    a("s_waitcnt lgkmcnt(0)")
    a(f"v_readfirstlane_b32 s{S_PURE}, v240")

def dma_consts(a):
    a(f"v_lshrrev_b32 v{V_DMA_LROW}, 3, v1")
    a("v_and_b32 v201, 7, v1\nv_and_b32 v208, 1, v3\nv_lshlrev_b32 v208, 1, v208\nv_xor_b32 v201, v201, v208")
    a("v_lshlrev_b32 v201, 4, v201")
    a(f"v_mul_u32_u24 v{V_W1A}, 3584, v{V_DMA_LROW}")
    a(f"s_lshl_b32 s56, s{S_J}, 9\ns_lshl_b32 s57, s{S_WAVE}, 7\ns_add_u32 s56, s56, s57")
    a(f"v_add_u32 v{V_W1A}, s56, v{V_W1A}")
    a(f"v_xor_b32 v208, 64, v201\nv_add_u32 v{V_W1B}, v{V_W1A}, v208\nv_add_u32 v{V_W1A}, v{V_W1A}, v201")
    a(f"s_lshl_b32 s56, s{S_I}, 6\ns_lshl_b32 s57, s{S_WAVE}, 4\ns_add_u32 s56, s56, s57\ns_mul_i32 s56, s56, 896")
    a(f"v_lshrrev_b32 v208, 1, v{V_DMA_LROW}\nv_and_b32 v209, 7, v1\nv_xor_b32 v208, v208, v209\nv_lshlrev_b32 v208, 4, v208")
    a(f"v_mul_u32_u24 v{V_QOFF}, 896, v{V_DMA_LROW}\nv_add_u32 v{V_QOFF}, s56, v{V_QOFF}")
    a(f"v_xor_b32 v209, 64, v208\nv_add_u32 v{V_QOFF+1}, v{V_QOFF}, v209\nv_add_u32 v{V_QOFF+1}, {8*896}, v{V_QOFF+1}\nv_add_u32 v{V_QOFF}, v{V_QOFF}, v208")
    a("v_lshrrev_b32 v208, 1, v2\nv_xor_b32 v208, v208, v3\nv_lshlrev_b32 v208, 4, v208")
    a(f"v_and_b32 v209, 7, v2\nv_lshl_add_u32 v208, v209, 7, v208\nv_lshrrev_b32 v209, 3, v2\nv_lshl_add_u32 v208, v209, 10, v208")
    a(f"v_add_u32 v{V_QRD}, s{S_RING}, v208\nv_xor_b32 v{V_QRD+1}, 64, v{V_QRD}")

S_RING = 70
def ring_base(a):
    a(f"s_mul_i32 s{S_RING}, s{S_WAVE}, {RSTR}\ns_add_u32 s{S_RING}, s{S_RING}, {L_RING}")

def dma_w1(ks, srdreg):
    L = []
    for qq in range(4):
        v = V_W1A if qq % 2 == 0 else V_W1B
        L.append(f"s_add_u32 m0, s{S_RING}, {slot1(ks)*4096 + 1024*qq}\ns_mov_b32 s71, {(32*ks + 8*qq)*3584}\n"
                 f"buffer_load_dwordx4 v{v}, {sd(srdreg)}, s71 offen lds")
    return L
def q_dma(srdreg):
    return [f"s_add_u32 m0, s{S_RING}, {1024*n}\ns_movk_i32 s71, {128*(n >> 1)}\n"
            f"buffer_load_dwordx4 v{V_QOFF + (n & 1)}, {sd(srdreg)}, s71 offen lds" for n in range(14)]
def q_reads():
    return [f"ds_read_b128 v[{QF+4*ks}:{QF+4*ks+3}], v{V_QRD + (ks & 1)} offset:{2048*(ks >> 1)}" for ks in range(14)]

def purity_issue(a):
    a(f"s_cmp_eq_u32 s{S_X}, 7\ns_cselect_b32 s57, 27, 31")
    a("v_min_u32 v244, s57, v1")
    a(f"v_lshlrev_b32 v244, 3, v244\nv_add_u32 v244, s{S_X}, v244\nv_lshlrev_b32 v244, 6, v244\nv_add_u32 v244, {F_X}, v244")
    lab = wave0(a)
    a(f"buffer_load_dwordx2 v[240:241], v244, {sd(SFLG)}, 0 offen sc1")
    a.label(lab)

def fm_issue(a):
    a(f"v_min_u32 v245, 20, v1\nv_lshlrev_b32 v245, 6, v245\nv_add_u32 v245, {F_M}, v245")
    lab = wave0(a)
    a(f"buffer_load_dwordx2 v[246:247], v245, {sd(SFLG)}, 0 offen sc1")
    a.label(lab)
def fm_check(a):
    lab = wave0(a)
    loop = a.newlabel("L_fm"); first = a.newlabel("L_fmf"); done = a.newlabel("L_fmd")
    a(f"s_mov_b32 s56, 0\ns_branch {first}")
    a.label(loop)
    a(f"buffer_load_dwordx2 v[246:247], v245, {sd(SFLG)}, 0 offen sc1\ns_waitcnt vmcnt(0)")
    a.label(first)
    a(f"v_cmp_ne_u64 vcc, s[{STAG}:{STAG+1}], v[246:247]")
    a(f"s_cmp_eq_u64 vcc, 0\ns_cbranch_scc1 {done}")
    a(f"s_add_u32 s56, s56, 1\ns_cmp_lt_u32 s56, {SPIN}\ns_cbranch_scc1 {loop}")
    a.label(done)
    a.label(lab)

def main_role(a):
    vm = VM(a)
    srd(a, R0, PK, SZ_T); srd(a, R1, PV, SZ_T); srd(a, R2, PSH, D * 8)
    a("v_and_b32 v4, 31, v0\nv_lshrrev_b32 v5, 5, v0")
    a(f"s_mul_i32 s56, s{S_SLOT}, {64*896}\ns_lshl_b32 s57, s{S_X}, 7\ns_add_u32 s56, s56, s57")
    a(f"v_mul_u32_u24 v6, {8*896}, v5\nv_lshl_add_u32 v6, v4, 2, v6\nv_add_u32 v6, s56, v6")
    a(f"v_subrev_u32 v7, {3*896}, v6")
    a(f"s_movk_i32 s58, {4*896}")
    a(f"s_lshl_b32 s59, s{S_X}, 9\nv_lshlrev_b32 v8, 4, v4\nv_add_u32 v8, s59, v8")
    VW, VK, VV = 144, 12, 24
    for i in range(3): vm.op(f"buffer_load_dword v{VK+i}, v7, {sd(R0)}, 0 offen offset:{896*i}", "k")
    for i in range(8): vm.op(f"buffer_load_dword v{VK+3+i}, v6, {sd(R0)}, {'0' if i < 4 else 's58'} offen offset:{896*(i%4)}", "k")
    vm.op(f"buffer_load_dwordx4 v[{VW}:{VW+3}], v8, {sd(R2)}, 0 offen", "k")
    for i in range(8): vm.op(f"buffer_load_dword v{VV+i}, v6, {sd(R1)}, {'0' if i < 4 else 's58'} offen offset:{896*(i%4)}", "v")
    SC2, SH, SCH, SCB = 60, 61, 62, 63
    code_prefetch(a, vm)
    a(f"s_lshr_b32 s{SC2}, s{S_WAVE}, 1\ns_and_b32 s{SH}, s{S_WAVE}, 1")
    a(f"s_lshl_b32 s{SCH}, s{S_X}, 6\ns_lshl_b32 s56, s{S_SLOT}, 1\ns_add_u32 s{SCH}, s{SCH}, s56\ns_add_u32 s{SCH}, s{SCH}, s{SC2}")
    a(f"s_lshl_b32 s{SCB}, s{SCH}, 12")
    srd(a, R3, PKF, 4096, f"s{SCB}")
    srd(a, R4, PD, D * 2)
    a(f"s_lshl_b32 s56, s{SH}, 11\nv_lshlrev_b32 v9, 4, v1\nv_add_u32 v92, s56, v9")
    a("v_sub_u32 v93, 4080, v92\nv_sub_u32 v94, 3056, v92\nv_subrev_u32 v95, 8, v93\nv_subrev_u32 v141, 8, v94")
    vm.op(f"buffer_load_dwordx4 v[96:99], v93, {sd(R3)}, 0 offen", "kf")
    vm.op(f"buffer_load_dwordx2 v[100:101], v95, {sd(R3)}, 0 offen", "kf")
    vm.op(f"buffer_load_dwordx4 v[104:107], v94, {sd(R3)}, 0 offen", "kf")
    vm.op(f"buffer_load_dwordx2 v[102:103], v141, {sd(R3)}, 0 offen", "kf")
    a(f"s_lshl_b32 s56, s{SCH}, 1\nv_mov_b32 v142, s56")
    vm.op(f"buffer_load_ushort v140, v142, {sd(R4)}, 0 offen", "D")
    srd(a, R2, PWS, SZ_T, WS_KVT)
    if cfg.pretouch:
        a(f"s_lshl_b32 s56, s{S_X}, 6\ns_lshl_b32 s57, s{S_WAVE}, 4\ns_add_u32 s56, s56, s57\ns_lshl_b32 s56, s56, 12\ns_lshl_b32 s57, s{S_SLOT}, 7\ns_add_u32 s56, s56, s57")
        a("v_lshlrev_b32 v143, 12, v2\nv_add_u32 v143, s56, v143")
        a("s_mov_b64 exec, 0xffff")
        vm.op(f"buffer_load_dword v254, v143, {sd(R2)}, 0 offen sc1", "pt")
        a("s_mov_b64 exec, -1")
    ring_base(a); dma_consts(a)
    srd(a, R0, PQ, SZ_T)
    for l in q_dma(R0): vm.op(l, "q")
    tag_and_publish(a)
    stamp(a, "issued")
    PITCH = 144
    a(f"v_mul_u32_u24 v10, {PITCH}, v4\nv_lshl_add_u32 v10, v5, 4, v10\nv_add_u32 v10, {L_U}, v10")
    a("v_lshrrev_b32 v11, 3, v0\nv_and_b32 v23, 1, v11\nv_lshlrev_b32 v23, 5, v23\nv_lshrrev_b32 v62, 1, v11\nv_add_u32 v23, v23, v62")
    a(f"v_mul_u32_u24 v23, {PITCH}, v23\nv_and_b32 v62, 7, v0\nv_lshl_add_u32 v23, v62, 4, v23\nv_add_u32 v23, {L_U}, v23")
    a(f"s_lshl_b32 s56, s{S_X}, 18\ns_lshl_b32 s57, s{S_SLOT}, 7\ns_add_u32 s56, s56, s57")
    a("v_lshlrev_b32 v11, 12, v11\nv_lshl_add_u32 v11, v62, 4, v11\nv_add_u32 v11, s56, v11")
    a(f"s_mov_b32 s{S_T1}, {32 * 4096}")
    W, KU, R, P = 32, 40, 64, 80
    vm.wait("k")
    stamp(a, "k_in")
    a(f"v_lshlrev_b32 v{W+0}, 16, v{VW+0}\nv_and_b32 v{W+2}, s{S_MASK}, v{VW+0}")
    a(f"v_lshlrev_b32 v{W+4}, 16, v{VW+1}\nv_and_b32 v{W+6}, s{S_MASK}, v{VW+1}")
    a(f"v_lshlrev_b32 v{W+1}, 16, v{VW+2}\nv_and_b32 v{W+3}, s{S_MASK}, v{VW+2}")
    a(f"v_lshlrev_b32 v{W+5}, 16, v{VW+3}\nv_and_b32 v{W+7}, s{S_MASK}, v{VW+3}")
    for i in range(11): unpack(a, KU + 2*i, KU + 2*i + 1, VK + i)
    for t in range(8):
        for n, j in enumerate((3, 2, 1, 0)):
            kr = KU + 2 * (t + 3 - j)
            if n == 0: pk(a, "mul", R + 2*t, kr, W + 2*j)
            else: pk(a, "fma", R + 2*t, kr, W + 2*j, R + 2*t)
    vm.wait("v")
    purity_issue(a)
    for t in range(8):
        unpack(a, P + 2*(t & 1), P + 2*(t & 1) + 1, VV + t)
        pk(a, "mul", R + 2*t, R + 2*t, P + 2*(t & 1))
    for u in range(4):
        a(f"v_cvt_pk_bf16_f32 v{84+u}, v{R+4*u}, v{R+4*u+2}")
        a(f"v_cvt_pk_bf16_f32 v{88+u}, v{R+4*u+1}, v{R+4*u+3}")
    a("ds_write_b128 v10, v[84:87]")
    a(f"ds_write_b128 v10, v[88:91] offset:{32*PITCH}")
    a("s_waitcnt lgkmcnt(0)\ns_barrier")
    a("ds_read_b128 v[64:67], v23")
    a(f"ds_read_b128 v[68:71], v23 offset:{16*PITCH}")
    a("s_waitcnt lgkmcnt(1)")
    vm.op(f"buffer_store_dwordx4 v[64:67], v11, {sd(R2)}, 0 offen", "st")
    a("s_waitcnt lgkmcnt(0)")
    vm.op(f"buffer_store_dwordx4 v[68:71], v11, {sd(R2)}, s{S_T1} offen", "st")
    stamp(a, "kv_st")
    vm.drain()
    purity_check(a)
    a("s_barrier")
    purity_fetch(a)
    lp = a.newlabel("L_pure1")
    a(f"s_cmp_eq_u32 s{S_PURE}, 1\ns_cbranch_scc1 {lp}")
    a(f"buffer_store_dwordx4 v[64:67], v11, {sd(R2)}, 0 offen sc1")
    a(f"buffer_store_dwordx4 v[68:71], v11, {sd(R2)}, s{S_T1} offen sc1")
    a("s_waitcnt vmcnt(0)\ns_barrier")
    a.label(lp)
    a(f"s_lshl_b32 s57, s2, 6")
    signal(a, 57, F_A, True)
    stamp(a, "fa")
    a(f"s_mul_i32 s64, s{SC2}, {L_CH}")
    a("s_mov_b32 s65, 0xffff")
    a("v_add_u32 v92, s64, v92")
    for i, (x4, x2) in enumerate(((96, 100), (104, 102))):
        Sx = {-2: x2, -1: x2 + 1, 0: x4, 1: x4 + 1, 2: x4 + 2, 3: x4 + 3}
        T = 108 + 16 * i
        for c in range(4):
            for e in range(4):
                if c == 0: a(f"v_alignbit_b32 v{T+e}, v{Sx[3-e]}, v{Sx[3-e]}, 16")
                elif c == 1: a(f"v_bfi_b32 v{T+4+e}, s65, v{Sx[3-e]}, v{Sx[2-e]}")
                elif c == 2: a(f"v_alignbit_b32 v{T+8+e}, v{Sx[2-e]}, v{Sx[2-e]}, 16")
                else: a(f"v_bfi_b32 v{T+12+e}, s65, v{Sx[2-e]}, v{Sx[1-e]}")
            a(f"ds_write_b128 v92, v[{T+4*c}:{T+4*c+3}] offset:{c*L_CSTR + 1024*i}")
    a("v_mov_b32 v28, 0\nv_mov_b32 v29, 0\nv_mov_b32 v30, 0\nv_mov_b32 v31, 0")
    a(f"v_lshrrev_b32 v12, 2, v1\nv_mul_u32_u24 v12, {L_CSTR}, v12\nv_and_b32 v13, 3, v1\nv_lshl_add_u32 v12, v13, 4, v12")
    a("s_add_u32 s56, s64, 4096\nv_add_u32 v12, s56, v12")
    a(f"s_mul_i32 s66, s{SC2}, {L_USTR}\ns_add_u32 s66, s66, {L_U}")
    a("v_add_u32 v13, s66, v9")
    lz = a.newlabel("L_nz")
    a(f"s_cmp_eq_u32 s{SH}, 0\ns_cbranch_scc0 {lz}")
    a("s_mov_b64 exec, 0xffff\nds_write_b128 v12, v[28:31]")
    a("s_mov_b64 exec, 0x3fffffff\nds_write_b128 v13, v[28:31]\ns_mov_b64 exec, -1")
    a.label(lz)
    srd(a, R1, PW1, D * F * 2); srd(a, R3, PWS, SZ_T, WS_YT)
    a(f"v_and_b32 v33, 3, v2\nv_sub_u32 v33, 3, v33\nv_mul_u32_u24 v33, {L_CSTR}, v33")
    a("v_lshrrev_b32 v34, 2, v2\nv_lshlrev_b32 v34, 3, v34\nv_sub_u32 v33, v33, v34\nv_lshl_add_u32 v33, v3, 4, v33")
    a(f"s_lshl_b32 s67, s{SH}, 8")
    a(f"s_add_u32 s56, s64, {4056 - 64*3 - 512*7}\ns_sub_u32 s56, s56, s67\nv_add_u32 v33, s56, v33")
    a("v_lshlrev_b32 v34, 5, v2\nv_lshl_add_u32 v34, v3, 4, v34")
    a(f"s_add_u32 s56, s66, {448 - 64*3}\ns_sub_u32 s56, s56, s67\nv_add_u32 v34, s56, v34")
    a(f"s_lshl_b32 s68, s{SH}, 11")
    a(f"s_add_u32 s69, s{SCB}, s68")
    a(f"v_and_b32 v35, 31, v1\nv_lshlrev_b32 v35, 3, v35\nv_add_u32 v35, s{S_X}, v35\nv_lshlrev_b32 v35, 6, v35\nv_add_u32 v35, {F_A}, v35")
    stamp(a, "w1done")
    poll(a, [35])
    a("s_barrier")
    stamp(a, "s1")
    a(f"s_add_u32 s56, s66, s68\ns_add_u32 s56, s56, 480")
    a("s_mov_b32 m0, s56")
    vm.op(f"buffer_load_dwordx4 v9, {sd(R2)}, s69 offen sc1 lds", "u")
    a("s_add_u32 m0, s56, 1024\ns_add_u32 s57, s69, 1024")
    vm.op(f"buffer_load_dwordx4 v9, {sd(R2)}, s57 offen sc1 lds", "u")
    vm.wait("u")
    a("s_waitcnt lgkmcnt(0)\ns_barrier")
    stamp(a, "u_in")
    ACC = 96
    def frag_loads(rp, st):
        L = []
        ab = 0 if st == 0 else 32
        bb = 64 if st == 0 else 96
        for x in range(8):
            L.append(f"ds_read_b128 a[{bb+4*x}:{bb+4*x+3}], v34 offset:{512*x + 64*(3-rp)}")
            o = 64 * (3 - rp) + 512 * (7 - x)
            L.append(f"ds_read_b64 a[{ab+4*x}:{ab+4*x+1}], v33 offset:{o}")
            L.append(f"ds_read_b64 a[{ab+4*x+2}:{ab+4*x+3}], v33 offset:{o+8}")
        return L
    order = [(i, w) for x in range(8) for i in range(x + 1) for w in range(x + 1) if max(i, w) == x and i + w <= 7]
    for l in frag_loads(0, 0): a(l)
    started = set()
    for rp in range(4):
        st = rp & 1
        a("s_waitcnt lgkmcnt(0)")
        nxt = frag_loads(rp + 1, st ^ 1) if rp < 3 else []
        if rp == 0: nxt = nxt + q_reads()
        pre = {0: dma_w1(0, R1) + dma_w1(1, R1), 1: dma_w1(2, R1) + dma_w1(3, R1), 2: dma_w1(4, R1) + dma_w1(5, R1), 3: []}[rp]
        ab = 0 if st == 0 else 32
        bb = 64 if st == 0 else 96
        for n, (i, w) in enumerate(order):
            tn = i + w
            acc = f"v[{ACC+4*tn}:{ACC+4*tn+3}]"
            c = acc if tn in started else "0"
            started.add(tn)
            a(f"{MF} {acc}, a[{ab+4*i}:{ab+4*i+3}], a[{bb+4*w}:{bb+4*w+3}], {c}")
            if nxt: a(nxt.pop(0))
            if n >= 34 and nxt: a(nxt.pop(0))
            if n % 4 == 2 and pre: vm.op(pre.pop(0), "pre")
        while nxt: a(nxt.pop(0))
    stamp(a, "conv")
    fm_issue(a)
    a(f"s_lshl_b32 s56, s{S_WAVE}, 12\ns_add_u32 s56, s56, {L_RED}\nv_add_u32 v35, s56, v9")
    a(f"s_xor_b32 s57, s{S_WAVE}, 1\ns_lshl_b32 s57, s57, 12\ns_add_u32 s57, s57, {L_RED}\nv_add_u32 v36, s57, v9")
    a("v_lshlrev_b32 v10, 5, v2\nv_lshl_add_u32 v10, v3, 3, v10")
    a("s_add_u32 s56, s66, s68\ns_add_u32 s56, s56, 480\nv_add_u32 v37, s56, v10")
    EU = 40
    for t in range(4): a(f"ds_read_b64 v[{EU+2*t}:{EU+2*t+1}], v37 offset:{512*t}")
    a("v_and_b32 v11, 1, v3\nv_lshlrev_b32 v11, 9, v11\nv_lshl_add_u32 v11, v2, 5, v11\nv_lshrrev_b32 v12, 1, v3\nv_lshl_add_u32 v11, v12, 4, v11")
    a("v_lshlrev_b32 v140, 16, v140")
    lh1 = a.newlabel("L_h1"); lj = a.newlabel("L_join")
    a(f"s_cmp_eq_u32 s{SH}, 1\ns_cbranch_scc1 {lh1}")
    for t in range(4): a(f"ds_write_b128 v35, v[{ACC+16+4*t}:{ACC+16+4*t+3}] offset:{1024*t}")
    a(f"s_branch {lj}")
    a.label(lh1)
    for t in range(4): a(f"ds_write_b128 v35, v[{ACC+4*t}:{ACC+4*t+3}] offset:{1024*t}")
    for e in range(16): a(f"v_mov_b32 v{ACC+e}, v{ACC+16+e}")
    a.label(lj)
    a("s_waitcnt lgkmcnt(4)")
    for t in range(4):
        for hp in range(2):
            e = 4 * t + 2 * hp
            unpack(a, 64 + 2*hp, 65 + 2*hp, EU + 2*t + hp)
            pk(a, "fma", ACC + e, 64 + 2*hp, 140, ACC + e, mods="op_sel_hi:[1,0,1]")
    a("s_waitcnt lgkmcnt(0)\ns_barrier")
    PR = 48
    for t in range(4): a(f"ds_read_b128 v[{PR+4*t}:{PR+4*t+3}], v36 offset:{1024*t}")
    O = 72
    for t in range(4):
        a(f"s_waitcnt lgkmcnt({3-t})")
        for hp in range(2):
            e = 4 * t + 2 * hp
            pk(a, "add", ACC + e, ACC + e, PR + e)
            a(f"v_cvt_pk_bf16_f32 v{O+2*t+hp}, v{ACC+e}, v{ACC+e+1}")
        if t & 1:
            tt = t - 1
            a(f"v_permlane16_swap_b32 v{O+2*tt}, v{O+2*tt+2}")
            a(f"v_permlane16_swap_b32 v{O+2*tt+1}, v{O+2*tt+3}")
            vm.op(f"buffer_store_dwordx4 v[{O+2*tt}:{O+2*tt+3}], v11, {sd(R3)}, s69 offen offset:{512*tt} sc1", "y")
    stamp(a, "y_st")
    vm.drain()
    a("s_barrier")
    a(f"s_lshl_b32 s57, s{S_X}, 5\ns_add_u32 s57, s57, s{S_SLOT}\ns_lshl_b32 s57, s57, 6")
    signal(a, 57, F_B, False)
    stamp(a, "fb")
    a(f"s_cmp_ge_u32 s{S_SLOT}, 28\ns_cbranch_scc1 L_nomlp")
    fm_check(a)
    a("s_barrier\ns_branch L_win2")
    a.label("L_nomlp")
    a(f"s_cmp_lg_u32 s2, 248\ns_cbranch_scc1 L_fin")
    a("v_lshlrev_b32 v35, 6, v1")
    a(f"v_add_u32 v35, {F_X}, v35\nv_add_u32 v36, 4096, v35\nv_add_u32 v37, 8192, v35")
    a("v_add_u32 v38, 192, v1\nv_and_b32 v39, 7, v38\nv_cmp_eq_u32 vcc, 7, v39\nv_mov_b32 v39, 224\nv_cmp_le_u32 s[60:61], v39, v38\ns_and_b64 vcc, vcc, s[60:61]")
    a(f"v_cndmask_b32 v38, v38, 0, vcc\nv_lshlrev_b32 v38, 6, v38\nv_add_u32 v38, {F_X}, v38")
    a(f"s_or_b32 s59, s{STAG+1}, 15\ns_mov_b32 s58, s{STAG}")
    poll(a, [35, 36, 37, 38], tagmask=True)
    lab = wave0(a)
    a(f"v_mov_b32 v250, {F_EPOCH}\nv_mov_b32 v252, s{STAG}\nv_mov_b32 v253, s{STAG+1}")
    a("s_mov_b64 exec, 1")
    a(f"buffer_store_dwordx2 v[252:253], v250, {sd(SFLG)}, 0 offen sc1")
    a("s_mov_b64 exec, -1")
    a.label(lab)
    a("s_branch L_fin")

def aux_role(a):
    vm = VM(a)
    lskip = a.newlabel("L_nomod")
    code_prefetch(a, vm)
    ring_base(a); dma_consts(a)
    srd(a, R3, PQ, SZ_T)
    for l in q_dma(R3): a(l)
    tag_and_publish(a)
    a(f"s_cmp_ge_u32 s{S_SLOT}, 21\ns_cbranch_scc1 {lskip}")
    SW, SC, SO = R0, R1, R2
    srd(a, SW, PWM, D * 6 * D * 2); srd(a, SC, PC, D * 2); srd(a, SO, PWS, 6 * D * 4, WS_MOD)
    a(f"s_lshl_b32 s56, s{S_SLOT}, 8")
    a("v_and_b32 v4, 15, v0\nv_lshrrev_b32 v5, 4, v0")
    a("v_mul_u32_u24 v6, 5376, v5\nv_lshl_add_u32 v6, v4, 4, v6\nv_add_u32 v6, s56, v6")
    a("v_lshlrev_b32 v7, 2, v0")
    a(f"buffer_load_dword v8, v7, {sd(SC)}, 0 offen")
    X = 16
    for i in range(28):
        a(f"s_mov_b32 s57, {i*16*5376}")
        a(f"buffer_load_dwordx4 v[{X+4*i}:{X+4*i+3}], v6, {sd(SW)}, s57 offen")
    a("s_waitcnt vmcnt(28)")
    unpack(a, 10, 11, 8)
    for r in (10, 11): a(f"v_mul_f32 v{r+2}, {hexf(-1.4426950408889634)}, v{r}")
    a("v_exp_f32 v12, v12\nv_exp_f32 v13, v13\nv_add_f32 v12, 1.0, v12\nv_add_f32 v13, 1.0, v13")
    a("v_rcp_f32 v12, v12\nv_rcp_f32 v13, v13\nv_mul_f32 v10, v10, v12\nv_mul_f32 v11, v11, v13")
    a("v_cvt_pk_bf16_f32 v14, v10, v11")
    unpack(a, 10, 11, 14)
    a("v_lshlrev_b32 v7, 3, v0")
    a("v_cmp_gt_u32 vcc, 224, v0\ns_and_saveexec_b64 s[58:59], vcc")
    a("ds_write_b64 v7, v[10:11]")
    a("s_mov_b64 exec, s[58:59]")
    a("s_waitcnt lgkmcnt(0)\ns_barrier")
    SCV = 128
    a("v_lshlrev_b32 v7, 2, v5")
    for i in range(28): a(f"ds_read_b32 v{SCV+i}, v7 offset:{64*i}")
    ACC = 160
    for e in range(8): a(f"v_mov_b32 v{ACC+e}, 0")
    a("s_waitcnt lgkmcnt(0)")
    for i in range(28):
        if i % 4 == 0: a(f"s_waitcnt vmcnt({max(0, 28 - i - 4)})")
        for e in range(4):
            t = 10 + 2 * (e & 1)
            unpack(a, t, t + 1, X + 4*i + e)
            sc = SCV + i
            if sc % 2 == 0: pk(a, "fma", ACC + 2*e, t, sc, ACC + 2*e, mods="op_sel_hi:[1,0,1]")
            else: pk(a, "fma", ACC + 2*e, t, sc - 1, ACC + 2*e, mods="op_sel:[0,1,0] op_sel_hi:[1,1,1]")
    a("v_lshlrev_b32 v7, 9, v5\nv_lshl_add_u32 v7, v4, 5, v7")
    a(f"ds_write_b128 v7, v[{ACC}:{ACC+3}] offset:2048")
    a(f"ds_write_b128 v7, v[{ACC+4}:{ACC+7}] offset:2064")
    a("s_waitcnt lgkmcnt(0)\ns_barrier")
    a("v_and_b32 v7, 127, v0\nv_lshlrev_b32 v7, 2, v7")
    for i in range(16): a(f"ds_read_b32 v{16+i}, v7 offset:{2048 + 512*i}")
    a("s_waitcnt lgkmcnt(0)")
    for i in range(1, 16): a(f"v_add_f32 v16, v16, v{16+i}")
    a(f"v_cvt_pk_bf16_f32 v17, v16, v16\nv_and_b32 v16, s{S_MASK}, v17")
    a(f"s_lshl_b32 s56, s{S_SLOT}, 9\nv_add_u32 v7, s56, v7")
    a("v_cmp_gt_u32 vcc, 128, v0\ns_and_saveexec_b64 s[58:59], vcc")
    l2 = a.newlabel("L_ms")
    a(f"s_cbranch_execz {l2}")
    a(f"buffer_store_dword v16, v7, {sd(SO)}, 0 offen sc1")
    a.label(l2)
    a("s_mov_b64 exec, s[58:59]")
    a("s_waitcnt vmcnt(0)\ns_barrier")
    a(f"s_lshl_b32 s57, s{S_SLOT}, 6")
    signal(a, 57, F_M, False)
    a.label(lskip)
    stamp(a, "mod")
    purity_issue(a)
    a("s_waitcnt vmcnt(0)")
    purity_check(a)
    srd(a, R1, PW1, D * F * 2)
    for l in q_reads(): a(l)
    for l in dma_w1(0, R1) + dma_w1(1, R1): a(l)
    a("s_waitcnt lgkmcnt(0)")
    for ks in range(2, 6):
        for l in dma_w1(ks, R1): a(l)
    fm_issue(a)
    a("s_waitcnt vmcnt(0)")
    fm_check(a)
    a("s_barrier")
    purity_fetch(a)

class LG:
    def __init__(self, a): self.a = a; self.q = []
    def op(self, text, tag=None):
        self.a(text); self.q.append(tag)
    def wait(self, tag):
        idx = max(i for i, t in enumerate(self.q) if t == tag)
        n = len(self.q) - 1 - idx
        self.a(f"s_waitcnt lgkmcnt({min(n, 15)})")
    def drain(self):
        self.a("s_waitcnt lgkmcnt(0)"); self.q = []

def tr_addr_nat(a, dst, sel, tmp):
    a(f"v_lshrrev_b32 v{tmp}, 2, v2")
    a(f"v_lshl_add_u32 v{dst}, v3, 3, v{tmp}")
    a(f"v_lshrrev_b32 v{tmp}, 1, v{tmp}")
    a(f"v_and_b32 v{tmp+1}, 1, v3\nv_lshl_or_b32 v{tmp}, v{tmp+1}, 1, v{tmp}")
    a(f"v_xor_b32 v{tmp}, {sel}, v{tmp}\nv_lshlrev_b32 v{tmp}, 5, v{tmp}")
    a(f"v_lshl_add_u32 v{dst}, v{dst}, 7, v{tmp}")
    a(f"v_and_b32 v{tmp}, 3, v2\nv_lshl_add_u32 v{dst}, v{tmp}, 3, v{dst}")
def tr_addr_old(a, dst, sel, tmp):
    a(f"v_lshrrev_b32 v{tmp}, 2, v2\nv_lshl_add_u32 v{dst}, v3, 2, v{tmp}")
    a(f"v_lshrrev_b32 v{tmp+1}, 1, v{dst}\nv_and_b32 v{tmp+1}, 3, v{tmp+1}")
    a(f"v_xor_b32 v{tmp+1}, {sel}, v{tmp+1}\nv_lshlrev_b32 v{tmp+1}, 5, v{tmp+1}")
    a(f"v_lshlrev_b32 v{dst}, 7, v{dst}\nv_add_u32 v{dst}, v{dst}, v{tmp+1}")
    a(f"v_and_b32 v{tmp}, 3, v2\nv_lshl_add_u32 v{dst}, v{tmp}, 3, v{dst}")

def ln_scalars(a, vs, vq, vneg):
    a(f"v_mul_f32 v{vs}, {hexf(1.0/448.0)}, v{vs}\nv_mul_f32 v{vq}, {hexf(1.0/448.0)}, v{vq}")
    a(f"v_fma_f32 v{vq}, -v{vs}, v{vs}, v{vq}\nv_max_f32 v{vq}, 0, v{vq}")
    a(f"v_add_f32 v{vq}, {hexf(1e-5)}, v{vq}\nv_rsq_f32 v{vq}, v{vq}")
    a(f"v_mul_f32 v{vneg}, -v{vs}, v{vq}".replace("v_mul_f32 v", "v_mul_f32_e64 v", 1))

def gram_step(a, frag0, ks, ones, su, gr):
    r = frag0 + 4 * ks
    a(f"{MF} v[{su}:{su+3}], v[{ones}:{ones+3}], v[{r}:{r+3}], {'0' if ks == 0 else f'v[{su}:{su+3}]'}")
    a(f"{MF} v[{gr}:{gr+3}], v[{r}:{r+3}], v[{r}:{r+3}], {'0' if ks == 0 else f'v[{gr}:{gr+3}]'}")
def gram_finish(a, lg, gr, idx):
    a(f"v_cndmask_b32 v{gr}, v{gr}, v{gr+1}, s[64:65]")
    a(f"v_cndmask_b32 v{gr}, v{gr}, v{gr+2}, s[66:67]")
    a(f"v_cndmask_b32 v{gr}, v{gr}, v{gr+3}, s[68:69]")
    lg.op(f"ds_bpermute_b32 v{gr+1}, v{idx}, v{gr}", "bp")
    lg.wait("bp")

def mlp_role(a):
    vm = VM(a); lg = LG(a)
    a.label("L_win2")
    srd(a, R2, PWS, 6 * D * 4, WS_MOD)
    a("v_lshlrev_b32 v4, 4, v0")
    MV = 208
    for n, row in enumerate((0, 1, 2, 3, 4)):
        a(f"s_movk_i32 s56, {row*448*4}")
        vm.op(f"buffer_load_dwordx4 v[{MV+4*n}:{MV+4*n+3}], v4, {sd(R2)}, s56 offen sc1", "mod")
    for ft in range(4):
        tr_addr_nat(a, 12 + ft, str(ft), 16)
        a(f"v_add_u32 v{12+ft}, s{S_RING}, v{12+ft}")
    def w1_reads(ks):
        so = slot1(ks) * 4096
        for x in range(4):
            lg.op(f"ds_read_b64_tr_b16 a[{16*ks+4*x}:{16*ks+4*x+1}], v{12+x} offset:{so}", f"w1_{ks}")
            lg.op(f"ds_read_b64_tr_b16 a[{16*ks+4*x+2}:{16*ks+4*x+3}], v{12+x} offset:{so+512}", f"w1_{ks}")
    def w1_refill(ks):
        lg.wait(f"w1_{ks - NSLOT}")
        for l in dma_w1(ks, R1): vm.op(l, f"w1_{ks}")
    w1_reads(0); w1_reads(1)
    a("v_mov_b32 v16, 0x3f803f80\nv_mov_b32 v17, v16\nv_mov_b32 v18, v16\nv_mov_b32 v19, v16")
    a("v_and_b32 v20, 3, v0")
    a("v_cmp_eq_u32 s[64:65], 1, v20\nv_cmp_eq_u32 s[66:67], 2, v20\nv_cmp_eq_u32 s[68:69], 3, v20")
    a("v_lshrrev_b32 v20, 2, v2\nv_lshl_add_u32 v20, v20, 4, v2\nv_lshlrev_b32 v20, 2, v20")
    SU, GR = 24, 28
    for ks in range(0, 4): gram_step(a, QF, ks, 16, SU, GR)
    w1_refill(6); w1_reads(2)
    for ks in range(4, 7): gram_step(a, QF, ks, 16, SU, GR)
    w1_refill(7); w1_reads(3)
    for ks in range(7, 10): gram_step(a, QF, ks, 16, SU, GR)
    w1_refill(8); w1_reads(4)
    for ks in range(10, 14): gram_step(a, QF, ks, 16, SU, GR)
    w1_refill(9); w1_reads(5)
    vm.wait("mod")
    for e in range(4):
        a(f"v_add_f32 v{MV+4+e}, 1.0, v{MV+4+e}\nv_add_f32 v{MV+16+e}, 1.0, v{MV+16+e}")
    for e in (0, 2):
        pk(a, "mul", MV + 4 + e, MV + 4 + e, MV + 8 + e)
        pk(a, "mul", MV + e, MV + e, MV + 8 + e)
    a("v_cmp_gt_u32 vcc, 112, v0\ns_and_saveexec_b64 s[58:59], vcc")
    a(f"ds_write_b128 v4, v[{MV+4}:{MV+7}] offset:{L_XT}")
    a(f"ds_write_b128 v4, v[{MV}:{MV+3}] offset:{L_XT + 1792}")
    a(f"ds_write_b128 v4, v[{MV+16}:{MV+19}] offset:{L_TAB}")
    a(f"ds_write_b128 v4, v[{MV+12}:{MV+15}] offset:{L_TAB + 1792}")
    a("s_mov_b64 exec, s[58:59]")
    w1_refill(10)
    gram_finish(a, lg, GR, 20)
    a(f"v_mov_b32 v8, v{SU}\nv_mov_b32 v10, v{GR+1}")
    ln_scalars(a, 8, 10, 6)
    w1_refill(11)
    lg.drain()
    a("s_barrier")
    stamp(a, "tab")
    a("v_lshlrev_b32 v21, 5, v3")
    TB = [208, 224, 240]
    def tab_reads(ks, base):
        t = TB[ks % 3]; o = base + 128 * ks
        for d, oo in ((0, 0), (4, 16), (8, 1792), (12, 1792 + 16)):
            lg.op(f"ds_read_b128 v[{t+d}:{t+d+3}], v21 offset:{o+oo}", f"tab{ks}")
    def g_step(ks):
        t = TB[ks % 3]
        for e in range(4):
            g = GF + 8 * ks + 2 * e
            unpack(a, g, g + 1, QF + 4 * ks + e)
        for e in range(4):
            g = GF + 8 * ks + 2 * e
            pk(a, "fma", g, g, 10, 6, mods="op_sel_hi:[1,0,0]")
        for e in range(4):
            g = GF + 8 * ks + 2 * e
            pk(a, "fma", g, g, t + 2 * e, t + 8 + 2 * e)
    tab_reads(0, L_XT); tab_reads(1, L_XT)
    kw_at = {0: 6, 2: 7, 4: 8, 5: 9, 7: 10, 8: 11, 11: 12, 13: 13}
    for ks in range(14):
        if ks + 2 < 14: tab_reads(ks + 2, L_XT)
        if ks in kw_at:
            kw = kw_at[ks]
            vm.wait(f"w1_{kw}")
            w1_reads(kw)
        lg.wait(f"tab{ks}")
        g_step(ks)
        if ks in kw_at and kw_at[ks] + NSLOT < 14: w1_refill(kw_at[ks] + NSLOT)
    stamp(a, "g")
    srd(a, R0, PWS, SZ_T, WS_YT); srd(a, R1, PW2, D * F * 2); srd(a, R3, PWS, SZ_H, WS_H)
    a("v_min_u32 v4, 55, v1\nv_lshlrev_b32 v4, 6, v4")
    a(f"v_add_u32 v4, {F_B}, v4\nv_add_u32 v5, {56*64}, v4\nv_add_u32 v7, {2*56*64}, v4\nv_add_u32 v8, {3*56*64}, v4")
    a(f"s_lshl_b32 s56, s{S_I}, 7\nv_lshlrev_b32 v9, 12, v{V_DMA_LROW}\nv_add_u32 v9, s56, v9")
    a("v_xor_b32 v11, 64, v201\nv_add_u32 v11, v9, v11\nv_add_u32 v9, v9, v201")
    a(f"v_and_b32 v208, 7, v1\nv_lshlrev_b32 v209, 1, v3\nv_xor_b32 v208, v208, v209\nv_lshlrev_b32 v208, 4, v208")
    a(f"v_mul_u32_u24 v{V_W1A}, 896, v{V_DMA_LROW}\nv_add_u32 v{V_W1A}, v{V_W1A}, v208\ns_lshl_b32 s57, s{S_J}, 7\nv_add_u32 v{V_W1A}, s57, v{V_W1A}")
    a(f"s_mul_i32 s62, s{S_WAVE}, {14*32*896}")
    tr_addr_nat(a, 22, f"s{S_WAVE}", 16)
    a("v_mov_b32 v16, 0x3f803f80\nv_mov_b32 v17, v16\nv_mov_b32 v18, v16\nv_mov_b32 v19, v16")
    vm.drain(); lg.drain()
    poll(a, [4, 5, 7, 8])
    a("s_barrier")
    stamp(a, "s2")
    a(f"s_mul_i32 s56, s{S_WAVE}, 14\ns_lshl_b32 s57, s56, 15\ns_lshl_b32 s58, s56, 10")
    for n in range(14):
        a(f"s_add_u32 m0, s58, {L_XT + 1024*n}\ns_add_u32 s59, s57, {32768*n}")
        vm.op(f"buffer_load_dwordx4 v{9 if n % 2 == 0 else 11}, {sd(R0)}, s59 offen sc1 lds", "y")
    a(f"s_mul_i32 s60, s{S_I}, 56\ns_lshl_b32 s61, s{S_J}, 3\ns_add_u32 s61, s60, s61\ns_lshl_b32 s59, s{S_WAVE}, 1\ns_add_u32 s61, s61, s59\ns_lshl_b32 s61, s61, 12")
    def dma_w2(n):
        L = []
        for qq in range(4):
            L.append(f"s_add_u32 m0, s{S_RING}, {(n % NSLOT)*4096 + 1024*qq}\ns_add_u32 s71, s62, {(32*n + 8*qq)*896}\n"
                     f"buffer_load_dwordx4 v{V_W1A}, {sd(R1)}, s71 offen lds")
        return L
    vm.wait("y")
    a("s_barrier")
    stamp(a, "y_in")
    YB = [208, 212, 216, 220]
    def y_reads(ks):
        y = YB[ks % 4]
        lg.op(f"ds_read_b64_tr_b16 v[{y}:{y+1}], v22 offset:{4096*ks}", f"y{ks}")
        lg.op(f"ds_read_b64_tr_b16 v[{y+2}:{y+3}], v22 offset:{4096*ks+512}", f"y{ks}")
    side = []
    if cfg.pretouch:
        side.append((f"v_lshlrev_b32 v4, 7, v1\nbuffer_load_dword v23, v4, {sd(R3)}, s61 offen sc1", "pt"))
    side += [(l, f"w2_{n}") for n in range(NSLOT) for l in dma_w2(n)]
    for ks in range(3): y_reads(ks)
    for ks in range(14):
        if ks + 3 < 14: y_reads(ks + 3)
        lg.wait(f"y{ks}")
        y = YB[ks % 4]
        for e in range(4):
            unpack(a, 224 + 2*e, 225 + 2*e, y + e)
            unpack(a, 232 + 2*e, 233 + 2*e, QF + 4 * ks + e)
        if ks > 0: gram_step(a, QF, ks - 1, 16, SU, GR)
        for e in range(4):
            g = GF + 8 * ks + 2 * e
            pk(a, "fma", g, g, 224 + 2*e, 232 + 2*e)
        for e in range(4):
            g = GF + 8 * ks + 2 * e
            a(f"v_cvt_pk_bf16_f32 v{QF+4*ks+e}, v{g}, v{g+1}")
        for _ in range(2):
            if side:
                l, tg = side.pop(0); vm.op(l, tg)
    gram_step(a, QF, 13, 16, SU, GR)
    while side:
        l, tg = side.pop(0); vm.op(l, tg)
    tab_base = L_TAB
    gram_finish(a, lg, GR, 20)
    a(f"v_mov_b32 v8, v{SU}\nv_mov_b32 v10, v{GR+1}")
    tab_reads(0, tab_base); tab_reads(1, tab_base)
    ln_scalars(a, 8, 10, 6)
    a(f"s_mul_i32 s56, s{S_WAVE}, {14*1024}\nv_lshlrev_b32 v5, 4, v1\nv_add_u32 v7, s56, v5")
    a("s_barrier")
    stamp(a, "p1")
    for ks in range(14):
        if ks + 2 < 14: tab_reads(ks + 2, tab_base)
        lg.wait(f"tab{ks}")
        t = TB[ks % 3]
        o = 24 + 4 * (ks & 1)
        for e in range(4):
            g = GF + 8 * ks + 2 * e
            pk(a, "fma", g, g, 10, 6, mods="op_sel_hi:[1,0,0]")
        for e in range(4):
            g = GF + 8 * ks + 2 * e
            pk(a, "fma", g, g, t + 2 * e, t + 8 + 2 * e)
        for e in range(4):
            g = GF + 8 * ks + 2 * e
            a(f"v_cvt_pk_bf16_f32 v{o+e}, v{g}, v{g+1}")
        lg.op(f"ds_write_b128 v7, v[{o}:{o+3}] offset:{L_XT + 1024*ks}", "hw")
    RES = 232
    a(f"s_lshl_b32 s56, s{S_J}, 3")
    a("s_set_gpr_idx_on s56, gpr_idx(SRC0)")
    for e in range(8): a(f"v_mov_b32 v{RES+e}, v{QF+e}")
    a("s_set_gpr_idx_off")
    for nt in range(4):
        tr_addr_old(a, 12 + nt, str(nt), 16)
        a(f"v_add_u32 v{12+nt}, s{S_RING}, v{12+nt}")
    lg.drain()
    a("s_barrier")
    stamp(a, "p2")
    ACC = 32
    BF = [96, 112]
    def b_reads(ks):
        return [f"ds_read_b128 v[{BF[ks & 1]+4*x}:{BF[ks & 1]+4*x+3}], v5 offset:{L_XT + (x*14 + ks)*1024}" for x in range(4)]
    for l in b_reads(0): a(l)
    for ks in range(14):
        a("s_waitcnt lgkmcnt(0)")
        extra = b_reads(ks + 1) if ks < 13 else []
        for ft in range(4):
            for tt in range(4):
                acc = f"v[{ACC+4*(4*ft+tt)}:{ACC+4*(4*ft+tt)+3}]"
                st = BF[ks & 1]
                a(f"{MF} {acc}, a[{16*ks+4*ft}:{16*ks+4*ft+3}], v[{st+4*tt}:{st+4*tt+3}], {'0' if ks == 0 else acc}")
                if extra: a(extra.pop(0))
    stamp(a, "g1")
    def w2_reads(n):
        so = (n % NSLOT) * 4096
        for x in range(4):
            lg.op(f"ds_read_b64_tr_b16 a[{16*n+4*x}:{16*n+4*x+1}], v{12+x} offset:{so}", f"w2_{n}")
            lg.op(f"ds_read_b64_tr_b16 a[{16*n+4*x+2}:{16*n+4*x+3}], v{12+x} offset:{so+2048}", f"w2_{n}")
    items = [("R", 0), ("R", 1)]
    for n in range(6, 12):
        items += [("W", n - 6)] + [("D", n, qq) for qq in range(4)]
        if n - 4 < 6: items.append(("R", n - 4))
    for n in range(6, 14):
        items += [("R", n)]
        if n + 6 < 14: items += [("W", n)] + [("D", n + 6, qq) for qq in range(4)]
    def do_item(it):
        if it[0] == "R":
            vm.wait(f"w2_{it[1]}"); w2_reads(it[1])
        elif it[0] == "W": lg.wait(f"w2_{it[1]}")
        else: vm.op(dma_w2(it[1])[it[2]], f"w2_{it[1]}")
    a(f"s_mov_b32 s64, {hexf(-1.4426950408889634)}\ns_mov_b32 s65, s64")
    HO = 96
    for kl in range(2):
        for tt in range(4):
            o = HO + 4 * (kl * 4 + tt)
            xs = [ACC + 4 * (4 * (2 * kl + (e >> 1)) + tt) + 2 * (e & 1) for e in range(4)]
            E = [128, 130, 132, 134]
            for e in range(4): a(f"v_pk_mul_f32 v[{E[e]}:{E[e]+1}], v[{xs[e]}:{xs[e]+1}], s[64:65]")
            for e in range(4): a(f"v_exp_f32 v{E[e]}, v{E[e]}\nv_exp_f32 v{E[e]+1}, v{E[e]+1}")
            for _ in range(2):
                if items: do_item(items.pop(0))
            for e in range(4): a(f"v_pk_add_f32 v[{E[e]}:{E[e]+1}], v[{E[e]}:{E[e]+1}], 1.0 op_sel_hi:[1,0]")
            for e in range(4): a(f"v_rcp_f32 v{E[e]}, v{E[e]}\nv_rcp_f32 v{E[e]+1}, v{E[e]+1}")
            for _ in range(3):
                if items: do_item(items.pop(0))
            for e in range(4): pk(a, "mul", E[e], E[e], xs[e])
            for e in range(4): a(f"v_cvt_pk_bf16_f32 v{o+e}, v{E[e]}, v{E[e]+1}")
    lg_ = a.newlabel("L_hg"); ld = a.newlabel("L_hd")
    a(f"s_cmp_eq_u32 s{S_PURE}, 0\ns_cbranch_scc1 {lg_}")
    for pol, nxt in (("", ld), ("sc1", None)):
        for fr in range(8):
            a(f"s_add_u32 s59, s61, {fr*1024}")
            a(f"buffer_store_dwordx4 v[{HO+4*fr}:{HO+4*fr+3}], v5, {sd(R3)}, s59 offen {pol}")
        if nxt:
            a(f"s_branch {nxt}")
            a.label(lg_)
    a.label(ld)
    vm.q += ["hst"] * 8
    stamp(a, "h_st")
    vm.wait("hst")
    a("s_barrier")
    a(f"s_mul_i32 s57, s{S_I}, 7\ns_add_u32 s57, s57, s{S_J}\ns_lshl_b32 s57, s57, 6")
    signal(a, 57, F_C, True)
    while items: do_item(items.pop(0))
    a(f"v_min_u32 v4, 6, v1\ns_mul_i32 s56, s{S_I}, 7\nv_add_u32 v4, s56, v4\nv_lshlrev_b32 v4, 6, v4\nv_add_u32 v4, {F_C}, v4")
    vm.drain(); lg.drain()
    poll(a, [4])
    a("s_barrier")
    stamp(a, "s3")
    a(f"s_mul_i32 s58, s{S_WAVE}, 14\ns_add_u32 s60, s60, s58\ns_lshl_b32 s60, s60, 12")
    HB = 96; DEP = 8; AHEAD = 3
    def h_loads(n):
        sl = n % DEP
        return [f"s_add_u32 s59, s60, {n*4096 + 1024*tt}\n"
                f"buffer_load_dwordx4 v[{HB+16*sl+4*tt}:{HB+16*sl+4*tt+3}], v5, {sd(R3)}, s59 offen sc1" for tt in range(4)]
    for n in range(AHEAD):
        for l in h_loads(n): vm.op(l, f"h{n}")
    for n in range(14):
        vm.wait(f"h{n}")
        sl = n % DEP
        nxt = h_loads(n + AHEAD) if n + AHEAD < 14 else []
        c = 0
        for nt in range(4):
            for tt in range(4):
                acc = f"v[{ACC+4*(4*nt+tt)}:{ACC+4*(4*nt+tt)+3}]"
                a(f"{MF} {acc}, a[{16*n+4*nt}:{16*n+4*nt+3}], v[{HB+16*sl+4*tt}:{HB+16*sl+4*tt+3}], {'0' if n == 0 else acc}")
                if c % 4 == 0 and nxt: vm.op(nxt.pop(0), f"h{n+AHEAD}")
                c += 1
    stamp(a, "g2")
    srd(a, R2, PWS, 6 * D * 4, WS_MOD); srd(a, R0, POUT, SZ_T)
    a(f"s_lshl_b32 s56, s{S_J}, 8\ns_add_u32 s56, s56, {5*448*4}\nv_lshlrev_b32 v7, 5, v3\nv_add_u32 v7, s56, v7")
    GB = 208
    for ps in range(2):
        vm.op(f"buffer_load_dwordx4 v[{GB+8*ps}:{GB+8*ps+3}], v7, {sd(R2)}, 0 offen offset:{128*ps} sc1", "gb")
        vm.op(f"buffer_load_dwordx4 v[{GB+8*ps+4}:{GB+8*ps+7}], v7, {sd(R2)}, 0 offen offset:{128*ps+16} sc1", "gb")
    a(f"v_mul_u32_u24 v8, 272, v2\nv_lshl_add_u32 v9, v3, 4, v8\nv_add_u32 v9, s{S_RING}, v9")
    for nt in range(4):
        for tt in range(4):
            r = ACC + 4 * (4 * nt + tt)
            a(f"ds_write_b128 v9, v[{r}:{r+3}] offset:{tt*4352 + 64*nt}")
    a(f"s_mul_i32 s56, s{S_WAVE}, {16*272}\ns_add_u32 s56, s56, {L_RING}")
    a("v_lshl_add_u32 v10, v3, 5, v8\nv_add_u32 v10, s56, v10")
    a(f"v_add_u32 v11, {2*RSTR}, v10")
    a(f"s_lshl_b32 s56, s{S_I}, 6\ns_lshl_b32 s57, s{S_WAVE}, 4\ns_add_u32 s56, s56, s57\ns_mul_i32 s56, s56, 896\ns_lshl_b32 s57, s{S_J}, 7\ns_add_u32 s56, s56, s57")
    a("v_mul_u32_u24 v12, 896, v2\nv_lshl_add_u32 v12, v3, 4, v12\nv_add_u32 v12, s56, v12")
    a("s_waitcnt lgkmcnt(0)\ns_barrier")
    P = 96
    for ps in range(2):
        for w in range(4):
            for hh in range(2):
                r = P + 32 * ps + 8 * w + 4 * hh
                a(f"ds_read_b128 v[{r}:{r+3}], v{10 if w < 2 else 11} offset:{(w & 1)*RSTR + 128*ps + 16*hh}")
    vm.wait("gb")
    for ps in range(2):
        a(f"s_waitcnt lgkmcnt({8 if ps == 0 else 0})")
        b = P + 32 * ps
        for e in range(4):
            x = b + 2 * e
            pk(a, "add", x, x, x + 8)
            pk(a, "add", x + 16, x + 16, x + 24)
        for e in range(4):
            x = b + 2 * e
            pk(a, "add", x, x, x + 16)
            unpack(a, 160 + 2*e, 161 + 2*e, RES + 4 * ps + e)
        for e in range(4):
            x = b + 2 * e
            pk(a, "fma", x, x, GB + 8 * ps + 2 * e, 160 + 2*e)
        for e in range(4):
            x = b + 2 * e
            a(f"v_cvt_pk_bf16_f32 v{168+4*ps+e}, v{x}, v{x+1}")
        a(f"buffer_store_dwordx4 v[{168+4*ps}:{168+4*ps+3}], v12, {sd(R0)}, 0 offen offset:{64*ps}")
    stamp(a, "end")

def gen(a):
    prologue(a)
    a(f"s_cmp_eq_u32 s{S_X}, 7\ns_cbranch_scc1 L_aux")
    main_role(a)
    a.label("L_aux")
    aux_role(a)
    mlp_role(a)
    a.label("L_fin")
    stamp_flush(a)
    a.label("L_end")

def build():
    hdr = open("cdna_kernels/" + NAME + ".s.ref").read().split("; Override launch")[0]
    a = Asm(); gen(a); n = a.hazards()
    label = NAME + "_kernel"
    out = hdr + f"; @launch grid=(256,1,1) block=(256,1,1) lds={LDS_BYTES}\n"
    out += f""".amdgcn_target "amdgcn-amd-amdhsa--gfx950"
.text
.globl {label}
.p2align 8
.type {label},@function
{label}:
{a.text()}
    s_endpgm
L_code_end:
.section .rodata,"a"
.p2align 6
.amdhsa_kernel {label}
  .amdhsa_next_free_vgpr 512
  .amdhsa_next_free_sgpr 100
  .amdhsa_accum_offset 256
  .amdhsa_group_segment_fixed_size 0
  .amdhsa_kernarg_size 112
  .amdhsa_user_sgpr_count 2
  .amdhsa_user_sgpr_kernarg_segment_ptr 1
  .amdhsa_system_sgpr_workgroup_id_x 1
.end_amdhsa_kernel
"""
    return out

if __name__ == "__main__":
    import argparse
    ap = argparse.ArgumentParser()
    ap.add_argument("out"); ap.add_argument("--stamps", default=""); ap.add_argument("--nocpf", action="store_true")
    ap.add_argument("--nopt", action="store_true"); ap.add_argument("--glob", action="store_true"); ap.add_argument("--cyc", action="store_true"); ap.add_argument("--wsbase", default="0")
    g = ap.parse_args()
    if g.stamps: cfg.stamps = {n: i for i, n in enumerate(g.stamps.split(","))}
    cfg.code_prefetch = not g.nocpf; cfg.pretouch = not g.nopt; cfg.force_global = g.glob; cfg.cyc = g.cyc
    b = int(g.wsbase, 0)
    WS_KVT += b; WS_YT += b; WS_MOD += b; WS_FLG += b; WS_H += b
    t = build()
    open(g.out, "w").write(t)
    print("written", len(t), "bytes,", t.count("\n"), "lines")
```

```python
import sys, struct
sys.path.insert(0, "dev")
from asmgen import Asm

NAME = "adaLN_cond__ssm_conv_h3__dense_activation_silu__prompt"
S, D, F = 2048, 448, 1792
SZ_T = D * S * 2
SZ_H = S * F * 2
PQ, PK, PV, PSH, PKF, PD, PBX, PW1, PW2, PC, PWM, POUT, PDBG, PWS = 4, 6, 8, 10, 12, 14, 16, 18, 20, 22, 24, 26, 28, 30
WS_KVT, WS_YT, WS_MOD, WS_FLG, WS_H = 0x000000, 0x200000, 0x400000, 0x410000, 0x800000
F_EPOCH, F_X, F_A, F_M, F_B, F_C, F_SIZE = 0x0, 0x1000, 0x5000, 0x9000, 0xA000, 0xE000, 0x12000
STAMP_WS = 0x1800000
R0, R1, R2, R3, R4 = 32, 36, 40, 44, 48
SFLG = 52
T0 = 56
STAG = 88; S_MASK = 90; S_WAVE = 91; S_X = 92; S_SLOT = 93; S_PURE = 94; S_I = 95; S_J = 96; S_XCC = 97; S_T1 = 98; S_T2 = 99
MF = "v_mfma_f32_16x16x32_bf16"
SPIN = 1 << 17

class Cfg:
    stamps = None
    code_prefetch = True
    pretouch = True
    force_global = False
    cyc = False
    touch = False
    touch2 = True
    pretouch_kv = 1
    exp_nodma = False
    probe = 0
    probe_wg = 0
cfg = Cfg()

def f32bits(x): return struct.unpack("<I", struct.pack("<f", x))[0]
def hexf(x): return "0x%08x" % f32bits(x)

def srd(a, r, lo, size, add=0):
    if isinstance(add, str):
        a(f"s_add_u32 s{r}, s{lo}, {add}\ns_addc_u32 s{r+1}, s{lo+1}, 0")
    elif add == 0:
        a(f"s_mov_b32 s{r}, s{lo}\ns_mov_b32 s{r+1}, s{lo+1}")
    else:
        a(f"s_add_u32 s{r}, s{lo}, {add}\ns_addc_u32 s{r+1}, s{lo+1}, 0")
    a(f"s_mov_b32 s{r+2}, {size}\ns_mov_b32 s{r+3}, 0x20000")
def sd(r): return f"s[{r}:{r+3}]"

def unpack(a, dlo, dhi, src):
    a(f"v_lshlrev_b32 v{dlo}, 16, v{src}")
    a(f"v_and_b32 v{dhi}, s{S_MASK}, v{src}")
def pk(a, op, d, x, y, z=None, mods=""):
    if z is None: a(f"v_pk_{op}_f32 v[{d}:{d+1}], v[{x}:{x+1}], v[{y}:{y+1}] {mods}")
    else: a(f"v_pk_{op}_f32 v[{d}:{d+1}], v[{x}:{x+1}], v[{y}:{y+1}], v[{z}:{z+1}] {mods}")

def mix(a, main, side, first=1):
    n = len(main); m = len(side)
    pos = [first + (k * (n - first)) // max(m, 1) for k in range(m)]
    k = 0
    for i, ins in enumerate(main):
        while k < m and pos[k] <= i:
            side[k](); k += 1
        a(ins)
    while k < m:
        side[k](); k += 1
def lines(fn):
    m = Asm(); fn(m); return [x.text for x in m.ins]

class VM:
    def __init__(self, a): self.a = a; self.q = []
    def op(self, text, tag=None):
        self.a(text); self.q.append(tag)
    def wait(self, tag):
        idx = max(i for i, t in enumerate(self.q) if t == tag)
        n = len(self.q) - 1 - idx
        self.a(f"s_waitcnt vmcnt({min(n, 63)})")
    def drain(self):
        self.a("s_waitcnt vmcnt(0)"); self.q = []

def stamp(a, name):
    if cfg.stamps and name in cfg.stamps:
        j = cfg.stamps[name]
        a(f"{'s_memtime' if cfg.cyc else 's_memrealtime'} s[{72+2*j}:{73+2*j}]")
def stamp_flush(a):
    if not cfg.stamps: return
    if cfg.probe:
        lab = a.newlabel("L_pr"); lp = a.newlabel("L_prl")
        a("s_waitcnt lgkmcnt(0)")
        a(f"s_cmp_lg_u32 s2, {cfg.probe_wg}\ns_cbranch_scc1 {lab}")
        a(f"s_sub_u32 s56, s74, s72\ns_mul_i32 s56, s56, {cfg.probe}")
        a("s_memrealtime s[58:59]\ns_waitcnt lgkmcnt(0)\ns_add_u32 s57, s58, s56")
        a.label(lp)
        a("s_memrealtime s[58:59]\ns_waitcnt lgkmcnt(0)\ns_sub_u32 s60, s58, s57\ns_cmp_lt_i32 s60, 0")
        a(f"s_cbranch_scc1 {lp}")
        a.label(lab)
        return
    lab = a.newlabel("L_st")
    a("s_waitcnt lgkmcnt(0)")
    a(f"s_cmp_lg_u32 s{S_WAVE}, 0\ns_cbranch_scc1 {lab}")
    a(f"s_add_u32 s56, s{PWS}, {STAMP_WS}\ns_addc_u32 s57, s{PWS+1}, 0")
    a("s_lshl_b32 s58, s2, 6\ns_add_u32 s56, s56, s58\ns_addc_u32 s57, s57, 0")
    a("v_mov_b32 v4, 0")
    for j in range(8):
        a(f"v_mov_b32 v5, s{72+2*j}")
        a(f"global_store_dword v4, v5, s[56:57] offset:{4*j}")
    a.label(lab)

def wave0(a):
    lab = a.newlabel("L_w0")
    a(f"s_cmp_lg_u32 s{S_WAVE}, 0\ns_cbranch_scc1 {lab}")
    return lab

def signal(a, off_sgpr, const, local):
    lab = wave0(a)
    a(f"s_add_u32 s56, s{off_sgpr}, {const}")
    a(f"v_mov_b32 v250, s56\nv_mov_b32 v252, s{STAG}\nv_mov_b32 v253, s{STAG+1}")
    a("s_mov_b64 exec, 1")
    if local:
        l2 = a.newlabel("L_sg"); l3 = a.newlabel("L_sd")
        a(f"s_cmp_eq_u32 s{S_PURE}, 0\ns_cbranch_scc1 {l2}")
        a(f"buffer_store_dwordx2 v[252:253], v250, {sd(SFLG)}, 0 offen")
        a(f"s_branch {l3}")
        a.label(l2)
        a(f"buffer_store_dwordx2 v[252:253], v250, {sd(SFLG)}, 0 offen sc1")
        a.label(l3)
    else:
        a(f"buffer_store_dwordx2 v[252:253], v250, {sd(SFLG)}, 0 offen sc1")
    a("s_mov_b64 exec, -1")
    a.label(lab)

def poll(a, addr_regs, tagmask=False):
    lab = wave0(a)
    loop = a.newlabel("L_poll"); done = a.newlabel("L_pdone")
    a(f"s_mov_b32 s56, 0")
    a.label(loop)
    for n, r in enumerate(addr_regs):
        a(f"buffer_load_dwordx2 v[{240+2*n}:{241+2*n}], v{r}, {sd(SFLG)}, 0 offen sc1")
    a("s_waitcnt vmcnt(0)")
    for n, r in enumerate(addr_regs):
        if tagmask:
            a(f"v_or_b32 v{241+2*n}, 15, v{241+2*n}")
        if n == 0:
            a(f"v_cmp_ne_u64 vcc, s[{STAG}:{STAG+1}], v[240:241]" if not tagmask else f"v_cmp_ne_u64 vcc, s[58:59], v[240:241]")
        else:
            a(f"v_cmp_ne_u64 s[60:61], s[{STAG}:{STAG+1}], v[{240+2*n}:{241+2*n}]" if not tagmask else f"v_cmp_ne_u64 s[60:61], s[58:59], v[{240+2*n}:{241+2*n}]")
            a("s_or_b64 vcc, vcc, s[60:61]")
    a(f"s_cmp_eq_u64 vcc, 0\ns_cbranch_scc1 {done}")
    a(f"s_add_u32 s56, s56, 1\ns_cmp_lt_u32 s56, {SPIN}\ns_cbranch_scc1 {loop}")
    a.label(done)
    a.label(lab)

L_KC, L_CSTR, L_CH = 0, 4160, 16640
L_U, L_USTR = 33280, 4608
L_RED = L_U + 2 * L_USTR
L_XT, L_TAB, L_RING, NSLOT = 0, 57344, 60928, 6
RSTR = NSLOT * 4096
LDS_BYTES = L_RING + 4 * RSTR + 4096

QF = 144
GF = 32
V_DMA_LROW = 200
V_W1A, V_W1B = 202, 203
V_QOFF = 204
V_QRD = 206
def slot1(ks): return (ks + 4) % NSLOT

def prologue(a):
    if cfg.code_prefetch: a("s_getpc_b64 s[62:63]")
    a("s_load_dwordx16 s[4:19], s[0:1], 0\ns_load_dwordx8 s[20:27], s[0:1], 64\ns_load_dwordx4 s[28:31], s[0:1], 96")
    if cfg.stamps:
        for j in range(8): a(f"s_mov_b32 s{72+2*j}, 0")
    stamp(a, "start")
    a(f"v_readfirstlane_b32 s{S_WAVE}, v0")
    a(f"s_mov_b32 s{S_MASK}, 0xffff0000")
    a(f"s_and_b32 s{S_X}, s2, 7\ns_lshr_b32 s{S_SLOT}, s2, 3")
    a(f"s_lshr_b32 s{S_WAVE}, s{S_WAVE}, 6")
    a("s_cmp_ge_u32 s2, 256\ns_cbranch_scc1 L_end")
    a(f"s_cmp_eq_u32 s{S_X}, 7\ns_cselect_b32 s56, 28, 32\ns_cmp_ge_u32 s{S_SLOT}, s56\ns_cbranch_scc1 L_end")
    a(f"s_getreg_b32 s{S_XCC}, hwreg(HW_REG_XCC_ID, 0, 4)")
    a("v_and_b32 v1, 63, v0\nv_and_b32 v2, 15, v0\nv_bfe_u32 v3, v0, 4, 2")
    a(f"s_mul_hi_u32 s56, s{S_SLOT}, {(2**32 + 6)//7}")
    a(f"s_mul_i32 s57, s56, 7\ns_sub_u32 s{S_J}, s{S_SLOT}, s57")
    a(f"s_min_u32 s56, s56, 3\ns_lshl_b32 s{S_I}, s{S_X}, 2\ns_add_u32 s{S_I}, s{S_I}, s56")
    a("s_waitcnt lgkmcnt(0)")
    srd(a, SFLG, PWS, F_SIZE, WS_FLG)
    a(f"s_add_u32 s56, s{PWS}, {WS_FLG}\ns_addc_u32 s57, s{PWS+1}, 0")
    a(f"s_load_dwordx2 s[{STAG}:{STAG+1}], s[56:57], {F_EPOCH}")

def code_prefetch(a, vm):
    if not cfg.code_prefetch: return
    a("s_sub_u32 s64, s62, 4\ns_subb_u32 s65, s63, 0\ns_mov_b32 s66, (L_code_end - %s_kernel)\ns_mov_b32 s67, 0x20000" % NAME)
    a(f"s_lshl_b32 s56, s{S_SLOT}, 10\ns_lshl_b32 s57, s{S_WAVE}, 8\ns_add_u32 s56, s56, s57")
    a("v_and_b32 v238, 1, v1\nv_lshlrev_b32 v238, 7, v238\nv_add_u32 v238, s56, v238")
    a("s_mov_b64 exec, 3")
    a("buffer_load_dword v239, v238, s[64:67], 0 offen")
    a("s_mov_b64 exec, -1")
    vm.q.append("cpf")

def tag_and_publish(a):
    a("s_waitcnt lgkmcnt(0)")
    a(f"s_add_u32 s{STAG}, s{STAG}, 1\ns_addc_u32 s{STAG+1}, s{STAG+1}, 0")
    lab = wave0(a)
    a(f"s_andn2_b32 s56, s{STAG+1}, 15\ns_or_b32 s56, s56, s{S_XCC}")
    a(f"s_lshl_b32 s57, s2, 6\ns_add_u32 s57, s57, {F_X}")
    a(f"v_mov_b32 v250, s57\nv_mov_b32 v252, s{STAG}\nv_mov_b32 v253, s56")
    a("s_mov_b64 exec, 1")
    a(f"buffer_store_dwordx2 v[252:253], v250, {sd(SFLG)}, 0 offen sc1")
    if cfg.pretouch:
        a(f"s_lshl_b32 s57, s{S_X}, 5\ns_add_u32 s57, s57, s{S_SLOT}\ns_lshl_b32 s57, s57, 6\ns_add_u32 s57, s57, {F_A}")
        a(f"s_mul_i32 s56, s{S_I}, 7\ns_add_u32 s56, s56, s{S_J}\ns_lshl_b32 s56, s56, 6\ns_add_u32 s56, s56, {F_C}")
        a("s_mov_b64 exec, 3\nv_mov_b32 v250, s57\nv_writelane_b32 v250, s56, 1")
        a(f"buffer_load_dword v251, v250, {sd(SFLG)}, 0 offen sc1")
    a("s_mov_b64 exec, -1")
    a.label(lab)

def purity_check(a):
    lab = wave0(a)
    loop = a.newlabel("L_px"); done = a.newlabel("L_pxd"); first = a.newlabel("L_pxf")
    a(f"s_or_b32 s59, s{STAG+1}, 15\ns_mov_b32 s58, s{STAG}")
    a(f"s_mov_b32 s56, 0\ns_branch {first}")
    a.label(loop)
    a(f"buffer_load_dwordx2 v[240:241], v244, {sd(SFLG)}, 0 offen sc1")
    a("s_waitcnt vmcnt(0)")
    a.label(first)
    a("v_or_b32 v243, 15, v241\nv_mov_b32 v242, v240")
    a("v_cmp_ne_u64 vcc, s[58:59], v[242:243]")
    a(f"s_cmp_eq_u64 vcc, 0\ns_cbranch_scc1 {done}")
    a(f"s_add_u32 s56, s56, 1\ns_cmp_lt_u32 s56, {SPIN}\ns_cbranch_scc1 {loop}")
    a.label(done)
    a("v_and_b32 v241, 15, v241")
    a(f"v_cmp_ne_u32 vcc, s{S_XCC}, v241")
    a(f"s_cmp_eq_u64 vcc, 0\ns_cselect_b32 s57, 1, 0")
    a(f"s_cmp_lt_u32 s56, {SPIN}\ns_cselect_b32 s57, s57, 0")
    if cfg.force_global: a("s_mov_b32 s57, 0")
    a(f"v_mov_b32 v240, s57\nv_mov_b32 v241, {LDS_BYTES - 16}")
    a("ds_write_b32 v241, v240")
    a("s_waitcnt lgkmcnt(0)")
    a.label(lab)

def purity_fetch(a):
    a(f"v_mov_b32 v241, {LDS_BYTES - 16}")
    a("ds_read_b32 v240, v241")
    a("s_waitcnt lgkmcnt(0)")
    a(f"v_readfirstlane_b32 s{S_PURE}, v240")

def dma_consts(a):
    a(f"v_lshrrev_b32 v{V_DMA_LROW}, 3, v1")
    a("v_and_b32 v201, 7, v1\nv_and_b32 v208, 1, v3\nv_lshlrev_b32 v208, 1, v208\nv_xor_b32 v201, v201, v208")
    a("v_lshlrev_b32 v201, 4, v201")
    a(f"v_mul_u32_u24 v{V_W1A}, 3584, v{V_DMA_LROW}")
    a(f"s_lshl_b32 s56, s{S_J}, 9\ns_lshl_b32 s57, s{S_WAVE}, 7\ns_add_u32 s56, s56, s57")
    a(f"v_add_u32 v{V_W1A}, s56, v{V_W1A}")
    a(f"v_xor_b32 v208, 64, v201\nv_add_u32 v{V_W1B}, v{V_W1A}, v208\nv_add_u32 v{V_W1A}, v{V_W1A}, v201")
    a(f"s_lshl_b32 s56, s{S_I}, 6\ns_lshl_b32 s57, s{S_WAVE}, 4\ns_add_u32 s56, s56, s57\ns_mul_i32 s56, s56, 896")
    a(f"v_lshrrev_b32 v208, 1, v{V_DMA_LROW}\nv_and_b32 v209, 7, v1\nv_xor_b32 v208, v208, v209\nv_lshlrev_b32 v208, 4, v208")
    a(f"v_mul_u32_u24 v{V_QOFF}, 896, v{V_DMA_LROW}\nv_add_u32 v{V_QOFF}, s56, v{V_QOFF}")
    a(f"v_xor_b32 v209, 64, v208\nv_add_u32 v{V_QOFF+1}, v{V_QOFF}, v209\nv_add_u32 v{V_QOFF+1}, {8*896}, v{V_QOFF+1}\nv_add_u32 v{V_QOFF}, v{V_QOFF}, v208")
    a("v_lshrrev_b32 v208, 1, v2\nv_xor_b32 v208, v208, v3\nv_lshlrev_b32 v208, 4, v208")
    a(f"v_and_b32 v209, 7, v2\nv_lshl_add_u32 v208, v209, 7, v208\nv_lshrrev_b32 v209, 3, v2\nv_lshl_add_u32 v208, v209, 10, v208")
    a(f"v_add_u32 v{V_QRD}, s{S_RING}, v208\nv_xor_b32 v{V_QRD+1}, 64, v{V_QRD}")

S_RING = 70
def ring_base(a):
    a(f"s_mul_i32 s{S_RING}, s{S_WAVE}, {RSTR}\ns_add_u32 s{S_RING}, s{S_RING}, {L_RING}")

def dma_w1(ks, srdreg):
    L = []
    for qq in range(4):
        v = V_W1A if qq % 2 == 0 else V_W1B
        L.append(f"s_add_u32 m0, s{S_RING}, {slot1(ks)*4096 + 1024*qq}\ns_mov_b32 s71, {(32*ks + 8*qq)*3584}\n"
                 f"buffer_load_dwordx4 v{v}, {sd(srdreg)}, s71 offen lds")
    return L
def q_dma(srdreg):
    return [f"s_add_u32 m0, s{S_RING}, {1024*n}\ns_movk_i32 s71, {128*(n >> 1)}\n"
            f"buffer_load_dwordx4 v{V_QOFF + (n & 1)}, {sd(srdreg)}, s71 offen lds" for n in range(14)]
def touch_w(a, srdreg, which, vm=None, force=False):
    if not (cfg.touch or force): return
    lab = a.newlabel("L_tw")
    a(f"s_lshl_b32 s56, s{S_X}, 2\ns_sub_u32 s56, s{S_I}, s56")
    if which == 1:
        a(f"s_mul_i32 s56, s56, {112*3584}\ns_lshl_b32 s57, s{S_J}, 9\ns_add_u32 s56, s56, s57")
        a("v_lshrrev_b32 v248, 2, v1\nv_mul_u32_u24 v248, 3584, v248\nv_and_b32 v249, 3, v1\nv_lshl_add_u32 v248, v249, 7, v248\nv_add_u32 v248, s56, v248")
        step = 16 * 3584
    else:
        a(f"s_mul_i32 s56, s56, {448*896}\ns_lshl_b32 s57, s{S_J}, 7\ns_add_u32 s56, s56, s57")
        a("v_mul_u32_u24 v248, 896, v1\nv_add_u32 v248, s56, v248")
        step = 64 * 896
    a(f"s_cmp_eq_u32 s{S_WAVE}, 0\ns_cbranch_scc1 {lab}")
    a(f"s_sub_u32 s56, s{S_WAVE}, 1\ns_mul_i32 s56, s56, {step}")
    a(f"buffer_load_dword v23, v248, {sd(srdreg)}, s56 offen")
    a(f"s_add_u32 s56, s56, {3*step}")
    a(f"buffer_load_dword v23, v248, {sd(srdreg)}, s56 offen")
    a(f"s_cmp_lg_u32 s{S_WAVE}, 1\ns_cbranch_scc1 {lab}")
    a(f"s_mov_b32 s56, {6*step}")
    a(f"buffer_load_dword v23, v248, {sd(srdreg)}, s56 offen")
    a.label(lab)

def q_reads():
    return [f"ds_read_b128 v[{QF+4*ks}:{QF+4*ks+3}], v{V_QRD + (ks & 1)} offset:{2048*(ks >> 1)}" for ks in range(14)]

def purity_issue(a):
    a(f"s_cmp_eq_u32 s{S_X}, 7\ns_cselect_b32 s57, 27, 31")
    a("v_min_u32 v244, s57, v1")
    a(f"v_lshlrev_b32 v244, 3, v244\nv_add_u32 v244, s{S_X}, v244\nv_lshlrev_b32 v244, 6, v244\nv_add_u32 v244, {F_X}, v244")
    lab = wave0(a)
    a(f"buffer_load_dwordx2 v[240:241], v244, {sd(SFLG)}, 0 offen sc1")
    a.label(lab)

def fm_issue(a):
    a(f"v_min_u32 v245, 20, v1\nv_lshlrev_b32 v245, 6, v245\nv_add_u32 v245, {F_M}, v245")
    lab = wave0(a)
    a(f"buffer_load_dwordx2 v[246:247], v245, {sd(SFLG)}, 0 offen sc1")
    a.label(lab)
def fm_check(a):
    lab = wave0(a)
    loop = a.newlabel("L_fm"); first = a.newlabel("L_fmf"); done = a.newlabel("L_fmd")
    a(f"s_mov_b32 s56, 0\ns_branch {first}")
    a.label(loop)
    a(f"buffer_load_dwordx2 v[246:247], v245, {sd(SFLG)}, 0 offen sc1\ns_waitcnt vmcnt(0)")
    a.label(first)
    a(f"v_cmp_ne_u64 vcc, s[{STAG}:{STAG+1}], v[246:247]")
    a(f"s_cmp_eq_u64 vcc, 0\ns_cbranch_scc1 {done}")
    a(f"s_add_u32 s56, s56, 1\ns_cmp_lt_u32 s56, {SPIN}\ns_cbranch_scc1 {loop}")
    a.label(done)
    a.label(lab)

def main_role(a):
    vm = VM(a)
    srd(a, R0, PK, SZ_T); srd(a, R1, PV, SZ_T); srd(a, R2, PSH, D * 8)
    a("v_and_b32 v4, 31, v0\nv_lshrrev_b32 v5, 5, v0")
    a(f"s_mul_i32 s56, s{S_SLOT}, {64*896}\ns_lshl_b32 s57, s{S_X}, 7\ns_add_u32 s56, s56, s57")
    a(f"v_mul_u32_u24 v6, {8*896}, v5\nv_lshl_add_u32 v6, v4, 2, v6\nv_add_u32 v6, s56, v6")
    a(f"v_subrev_u32 v7, {3*896}, v6")
    a(f"s_movk_i32 s58, {4*896}")
    a(f"s_lshl_b32 s59, s{S_X}, 9\nv_lshlrev_b32 v8, 4, v4\nv_add_u32 v8, s59, v8")
    VW, VK, VV = 144, 12, 24
    for i in range(3): vm.op(f"buffer_load_dword v{VK+i}, v7, {sd(R0)}, 0 offen offset:{896*i}", "k")
    for i in range(8): vm.op(f"buffer_load_dword v{VK+3+i}, v6, {sd(R0)}, {'0' if i < 4 else 's58'} offen offset:{896*(i%4)}", "k")
    vm.op(f"buffer_load_dwordx4 v[{VW}:{VW+3}], v8, {sd(R2)}, 0 offen", "k")
    for i in range(8): vm.op(f"buffer_load_dword v{VV+i}, v6, {sd(R1)}, {'0' if i < 4 else 's58'} offen offset:{896*(i%4)}", "v")
    SC2, SH, SCH, SCB = 60, 61, 62, 63
    code_prefetch(a, vm)
    a(f"s_lshr_b32 s{SC2}, s{S_WAVE}, 1\ns_and_b32 s{SH}, s{S_WAVE}, 1")
    a(f"s_lshl_b32 s{SCH}, s{S_X}, 6\ns_lshl_b32 s56, s{S_SLOT}, 1\ns_add_u32 s{SCH}, s{SCH}, s56\ns_add_u32 s{SCH}, s{SCH}, s{SC2}")
    a(f"s_lshl_b32 s{SCB}, s{SCH}, 12")
    srd(a, R3, PKF, 4096, f"s{SCB}")
    srd(a, R4, PD, D * 2)
    a(f"s_lshl_b32 s56, s{SH}, 11\nv_lshlrev_b32 v9, 4, v1\nv_add_u32 v92, s56, v9")
    a("v_sub_u32 v93, 4080, v92\nv_sub_u32 v94, 3056, v92\nv_subrev_u32 v95, 8, v93\nv_subrev_u32 v141, 8, v94")
    a(f"s_lshl_b32 s56, s{SCH}, 1\nv_mov_b32 v142, s56")
    def second_loads():
        vm.op(f"buffer_load_dwordx4 v[96:99], v93, {sd(R3)}, 0 offen", "kf")
        vm.op(f"buffer_load_dwordx2 v[100:101], v95, {sd(R3)}, 0 offen", "kf")
        vm.op(f"buffer_load_dwordx4 v[104:107], v94, {sd(R3)}, 0 offen", "kf")
        vm.op(f"buffer_load_dwordx2 v[102:103], v141, {sd(R3)}, 0 offen", "kf")
        vm.op(f"buffer_load_ushort v140, v142, {sd(R4)}, 0 offen", "D")
    srd(a, R2, PWS, SZ_T, WS_KVT)
    def kv_pretouch():
        a(f"s_lshl_b32 s56, s{S_X}, 6\ns_lshl_b32 s57, s{S_WAVE}, 4\ns_add_u32 s56, s56, s57\ns_lshl_b32 s56, s56, 12\ns_lshl_b32 s57, s{S_SLOT}, 7\ns_add_u32 s56, s56, s57")
        a("v_lshlrev_b32 v143, 12, v2\nv_add_u32 v143, s56, v143")
        a("s_mov_b64 exec, 0xffff")
        vm.op(f"buffer_load_dword v254, v143, {sd(R2)}, 0 offen sc1", "pt")
        a("s_mov_b64 exec, -1")
    if cfg.pretouch_kv == 1: kv_pretouch()
    tag_and_publish(a)
    stamp(a, "issued")
    PITCH = 144
    a(f"v_mul_u32_u24 v10, {PITCH}, v4\nv_lshl_add_u32 v10, v5, 4, v10\nv_add_u32 v10, {L_U}, v10")
    a("v_lshrrev_b32 v11, 3, v0\nv_and_b32 v23, 1, v11\nv_lshlrev_b32 v23, 5, v23\nv_lshrrev_b32 v62, 1, v11\nv_add_u32 v23, v23, v62")
    a(f"v_mul_u32_u24 v23, {PITCH}, v23\nv_and_b32 v62, 7, v0\nv_lshl_add_u32 v23, v62, 4, v23\nv_add_u32 v23, {L_U}, v23")
    a(f"s_lshl_b32 s56, s{S_X}, 18\ns_lshl_b32 s57, s{S_SLOT}, 7\ns_add_u32 s56, s56, s57")
    a("v_lshlrev_b32 v11, 12, v11\nv_lshl_add_u32 v11, v62, 4, v11\nv_add_u32 v11, s56, v11")
    a(f"s_mov_b32 s{S_T1}, {32 * 4096}")
    W, KU, R, P = 32, 40, 64, 80
    vm.wait("k")
    stamp(a, "k_in")
    if cfg.pretouch_kv == 2: kv_pretouch()
    second_loads()
    a(f"v_lshlrev_b32 v{W+0}, 16, v{VW+0}\nv_and_b32 v{W+2}, s{S_MASK}, v{VW+0}")
    a(f"v_lshlrev_b32 v{W+4}, 16, v{VW+1}\nv_and_b32 v{W+6}, s{S_MASK}, v{VW+1}")
    a(f"v_lshlrev_b32 v{W+1}, 16, v{VW+2}\nv_and_b32 v{W+3}, s{S_MASK}, v{VW+2}")
    a(f"v_lshlrev_b32 v{W+5}, 16, v{VW+3}\nv_and_b32 v{W+7}, s{S_MASK}, v{VW+3}")
    for i in range(11): unpack(a, KU + 2*i, KU + 2*i + 1, VK + i)
    for t in range(8):
        for n, j in enumerate((3, 2, 1, 0)):
            kr = KU + 2 * (t + 3 - j)
            if n == 0: pk(a, "mul", R + 2*t, kr, W + 2*j)
            else: pk(a, "fma", R + 2*t, kr, W + 2*j, R + 2*t)
    stamp(a, "fir")
    vm.wait("v")
    stamp(a, "v_in")
    purity_issue(a)
    for t in range(8):
        unpack(a, P + 2*(t & 1), P + 2*(t & 1) + 1, VV + t)
        pk(a, "mul", R + 2*t, R + 2*t, P + 2*(t & 1))
    for u in range(4):
        a(f"v_cvt_pk_bf16_f32 v{84+u}, v{R+4*u}, v{R+4*u+2}")
        a(f"v_cvt_pk_bf16_f32 v{88+u}, v{R+4*u+1}, v{R+4*u+3}")
    a("ds_write_b128 v10, v[84:87]")
    a(f"ds_write_b128 v10, v[88:91] offset:{32*PITCH}")
    stamp(a, "ldsw")
    a("s_waitcnt lgkmcnt(0)\ns_barrier")
    stamp(a, "bar1")
    a("ds_read_b128 v[64:67], v23")
    a(f"ds_read_b128 v[68:71], v23 offset:{16*PITCH}")
    a("s_waitcnt lgkmcnt(1)")
    vm.op(f"buffer_store_dwordx4 v[64:67], v11, {sd(R2)}, 0 offen", "st")
    a("s_waitcnt lgkmcnt(0)")
    vm.op(f"buffer_store_dwordx4 v[68:71], v11, {sd(R2)}, s{S_T1} offen", "st")
    stamp(a, "kv_st")
    ring_base(a); dma_consts(a)
    srd(a, R0, PQ, SZ_T); srd(a, R1, PW1, D * F * 2)
    stamp(a, "consts")
    vm.drain()
    stamp(a, "drained")
    purity_check(a)
    stamp(a, "pchk")
    a("s_barrier")
    purity_fetch(a)
    stamp(a, "pfetch")
    lp = a.newlabel("L_pure1")
    a(f"s_cmp_eq_u32 s{S_PURE}, 1\ns_cbranch_scc1 {lp}")
    a(f"buffer_store_dwordx4 v[64:67], v11, {sd(R2)}, 0 offen sc1")
    a(f"buffer_store_dwordx4 v[68:71], v11, {sd(R2)}, s{S_T1} offen sc1")
    a("s_waitcnt vmcnt(0)\ns_barrier")
    a.label(lp)
    a(f"s_lshl_b32 s57, s{S_X}, 5\ns_add_u32 s57, s57, s{S_SLOT}\ns_lshl_b32 s57, s57, 6")
    signal(a, 57, F_A, True)
    stamp(a, "fa")
    touch_w(a, R1, 1)
    a(f"s_mul_i32 s64, s{SC2}, {L_CH}")
    a("s_mov_b32 s65, 0xffff")
    a("v_add_u32 v92, s64, v92")
    for i, (x4, x2) in enumerate(((96, 100), (104, 102))):
        Sx = {-2: x2, -1: x2 + 1, 0: x4, 1: x4 + 1, 2: x4 + 2, 3: x4 + 3}
        T = 108 + 16 * i
        for c in range(4):
            for e in range(4):
                if c == 0: a(f"v_alignbit_b32 v{T+e}, v{Sx[3-e]}, v{Sx[3-e]}, 16")
                elif c == 1: a(f"v_bfi_b32 v{T+4+e}, s65, v{Sx[3-e]}, v{Sx[2-e]}")
                elif c == 2: a(f"v_alignbit_b32 v{T+8+e}, v{Sx[2-e]}, v{Sx[2-e]}, 16")
                else: a(f"v_bfi_b32 v{T+12+e}, s65, v{Sx[2-e]}, v{Sx[1-e]}")
            a(f"ds_write_b128 v92, v[{T+4*c}:{T+4*c+3}] offset:{c*L_CSTR + 1024*i}")
    a("v_mov_b32 v28, 0\nv_mov_b32 v29, 0\nv_mov_b32 v30, 0\nv_mov_b32 v31, 0")
    a(f"v_lshrrev_b32 v12, 2, v1\nv_mul_u32_u24 v12, {L_CSTR}, v12\nv_and_b32 v13, 3, v1\nv_lshl_add_u32 v12, v13, 4, v12")
    a("s_add_u32 s56, s64, 4096\nv_add_u32 v12, s56, v12")
    a(f"s_mul_i32 s66, s{SC2}, {L_USTR}\ns_add_u32 s66, s66, {L_U}")
    a("v_add_u32 v13, s66, v9")
    lz = a.newlabel("L_nz")
    a(f"s_cmp_eq_u32 s{SH}, 0\ns_cbranch_scc0 {lz}")
    a("s_mov_b64 exec, 0xffff\nds_write_b128 v12, v[28:31]")
    a("s_mov_b64 exec, 0x3fffffff\nds_write_b128 v13, v[28:31]\ns_mov_b64 exec, -1")
    a.label(lz)
    srd(a, R3, PWS, SZ_T, WS_YT)
    a(f"v_and_b32 v33, 3, v2\nv_sub_u32 v33, 3, v33\nv_mul_u32_u24 v33, {L_CSTR}, v33")
    a("v_lshrrev_b32 v34, 2, v2\nv_lshlrev_b32 v34, 3, v34\nv_sub_u32 v33, v33, v34\nv_lshl_add_u32 v33, v3, 4, v33")
    a(f"s_lshl_b32 s67, s{SH}, 8")
    a(f"s_add_u32 s56, s64, {4056 - 64*3 - 512*7}\ns_sub_u32 s56, s56, s67\nv_add_u32 v33, s56, v33")
    a("v_lshlrev_b32 v34, 5, v2\nv_lshl_add_u32 v34, v3, 4, v34")
    a(f"s_add_u32 s56, s66, {448 - 64*3}\ns_sub_u32 s56, s56, s67\nv_add_u32 v34, s56, v34")
    a(f"s_lshl_b32 s68, s{SH}, 11")
    a(f"s_add_u32 s69, s{SCB}, s68")
    a(f"s_lshl_b32 s56, s{S_X}, 5\nv_and_b32 v35, 31, v1\nv_add_u32 v35, s56, v35\nv_lshlrev_b32 v35, 6, v35\nv_add_u32 v35, {F_A}, v35")
    stamp(a, "w1done")
    poll(a, [35])
    a("s_barrier")
    stamp(a, "s1")
    a(f"s_add_u32 s56, s66, s68\ns_add_u32 s56, s56, 480")
    a("s_mov_b32 m0, s56")
    vm.op(f"buffer_load_dwordx4 v9, {sd(R2)}, s69 offen sc1 lds", "u")
    a("s_add_u32 m0, s56, 1024\ns_add_u32 s57, s69, 1024")
    vm.op(f"buffer_load_dwordx4 v9, {sd(R2)}, s57 offen sc1 lds", "u")
    vm.wait("u")
    a("s_waitcnt lgkmcnt(0)\ns_barrier")
    stamp(a, "u_in")
    ACC = 96
    def frag_loads(rp, st):
        L = []
        ab = 0 if st == 0 else 32
        bb = 64 if st == 0 else 96
        for x in range(8):
            L.append(f"ds_read_b128 a[{bb+4*x}:{bb+4*x+3}], v34 offset:{512*x + 64*(3-rp)}")
            o = 64 * (3 - rp) + 512 * (7 - x)
            L.append(f"ds_read_b64 a[{ab+4*x}:{ab+4*x+1}], v33 offset:{o}")
            L.append(f"ds_read_b64 a[{ab+4*x+2}:{ab+4*x+3}], v33 offset:{o+8}")
        return L
    order = [(i, w) for x in range(8) for i in range(x + 1) for w in range(x + 1) if max(i, w) == x and i + w <= 7]
    for l in frag_loads(0, 0): a(l)
    started = set()
    stamp(a, "c0")
    for rp in range(4):
        st = rp & 1
        a("s_waitcnt lgkmcnt(0)")
        stamp(a, f"r{rp}")
        nxt = frag_loads(rp + 1, st ^ 1) if rp < 3 else []
        if rp == 0:
            pre = [(l, "q") for l in q_dma(R0)]; at = (1, 3, 6, 8, 11, 13, 16, 18, 21, 23, 26, 28, 31, 33)
        elif rp == 1:
            pre = [(l, "w1_0") for l in dma_w1(0, R1)] + [(l, "w1_1") for l in dma_w1(1, R1)]; at = (2, 6, 10, 14, 18, 22, 26, 30)
        elif rp == 2:
            pre = []; at = (); vm.wait("q"); nxt = nxt + q_reads()
        else:
            pre = [(l, "w1_2") for l in dma_w1(2, R1)] + [(l, "w1_3") for l in dma_w1(3, R1)]; at = (2, 6, 10, 14, 18, 22, 26, 30)
        ab = 0 if st == 0 else 32
        bb = 64 if st == 0 else 96
        for n, (i, w) in enumerate(order):
            tn = i + w
            acc = f"v[{ACC+4*tn}:{ACC+4*tn+3}]"
            c = acc if tn in started else "0"
            started.add(tn)
            a(f"{MF} {acc}, a[{ab+4*i}:{ab+4*i+3}], a[{bb+4*w}:{bb+4*w+3}], {c}")
            if nxt: a(nxt.pop(0))
            if n >= 34 and nxt: a(nxt.pop(0))
            if n in at and pre: vm.op(*pre.pop(0))
        while nxt: a(nxt.pop(0))
    pre = []
    if cfg.exp_nodma:
        for it in pre: vm.op(*it)
    stamp(a, "conv")
    fm_issue(a)
    a(f"s_lshl_b32 s56, s{S_WAVE}, 12\ns_add_u32 s56, s56, {L_RED}\nv_add_u32 v35, s56, v9")
    a(f"s_xor_b32 s57, s{S_WAVE}, 1\ns_lshl_b32 s57, s57, 12\ns_add_u32 s57, s57, {L_RED}\nv_add_u32 v36, s57, v9")
    a("v_lshlrev_b32 v10, 5, v2\nv_lshl_add_u32 v10, v3, 3, v10")
    a("s_add_u32 s56, s66, s68\ns_add_u32 s56, s56, 480\nv_add_u32 v37, s56, v10")
    EU = 40
    for t in range(4): a(f"ds_read_b64 v[{EU+2*t}:{EU+2*t+1}], v37 offset:{512*t}")
    a("v_and_b32 v11, 1, v3\nv_lshlrev_b32 v11, 9, v11\nv_lshl_add_u32 v11, v2, 5, v11\nv_lshrrev_b32 v12, 1, v3\nv_lshl_add_u32 v11, v12, 4, v11")
    a("v_lshlrev_b32 v140, 16, v140")
    lh1 = a.newlabel("L_h1"); lj = a.newlabel("L_join")
    a(f"s_cmp_eq_u32 s{SH}, 1\ns_cbranch_scc1 {lh1}")
    for t in range(4): a(f"ds_write_b128 v35, v[{ACC+16+4*t}:{ACC+16+4*t+3}] offset:{1024*t}")
    a(f"s_branch {lj}")
    a.label(lh1)
    for t in range(4): a(f"ds_write_b128 v35, v[{ACC+4*t}:{ACC+4*t+3}] offset:{1024*t}")
    for e in range(16): a(f"v_mov_b32 v{ACC+e}, v{ACC+16+e}")
    a.label(lj)
    late = [(l, "w1_4") for l in dma_w1(4, R1)] + [(l, "w1_5") for l in dma_w1(5, R1)]
    a("s_waitcnt lgkmcnt(4)")
    for t in range(4):
        for hp in range(2):
            e = 4 * t + 2 * hp
            unpack(a, 64 + 2*hp, 65 + 2*hp, EU + 2*t + hp)
            pk(a, "fma", ACC + e, 64 + 2*hp, 140, ACC + e, mods="op_sel_hi:[1,0,1]")
            vm.op(*late.pop(0))
    a("s_waitcnt lgkmcnt(0)\ns_barrier")
    PR = 48
    for t in range(4): a(f"ds_read_b128 v[{PR+4*t}:{PR+4*t+3}], v36 offset:{1024*t}")
    O = 72
    for t in range(4):
        a(f"s_waitcnt lgkmcnt({3-t})")
        for hp in range(2):
            e = 4 * t + 2 * hp
            pk(a, "add", ACC + e, ACC + e, PR + e)
            a(f"v_cvt_pk_bf16_f32 v{O+2*t+hp}, v{ACC+e}, v{ACC+e+1}")
        if t & 1:
            tt = t - 1
            a(f"v_permlane16_swap_b32 v{O+2*tt}, v{O+2*tt+2}")
            a(f"v_permlane16_swap_b32 v{O+2*tt+1}, v{O+2*tt+3}")
            vm.op(f"buffer_store_dwordx4 v[{O+2*tt}:{O+2*tt+3}], v11, {sd(R3)}, s69 offen offset:{512*tt} sc1", "y")
    stamp(a, "y_st")
    ln1_stats(a)
    vm.wait("y")
    a("s_barrier")
    a(f"s_lshl_b32 s57, s{S_X}, 5\ns_add_u32 s57, s57, s{S_SLOT}\ns_lshl_b32 s57, s57, 6")
    signal(a, 57, F_B, False)
    stamp(a, "fb")
    a(f"s_cmp_ge_u32 s{S_SLOT}, 28\ns_cbranch_scc1 L_nomlp")
    a("s_branch L_win2")
    a.label("L_nomlp")
    a(f"s_cmp_lg_u32 s2, 248\ns_cbranch_scc1 L_fin")
    a("v_lshlrev_b32 v35, 6, v1")
    a(f"v_add_u32 v35, {F_X}, v35\nv_add_u32 v36, 4096, v35\nv_add_u32 v37, 8192, v35")
    a("v_add_u32 v38, 192, v1\nv_and_b32 v39, 7, v38\nv_cmp_eq_u32 vcc, 7, v39\nv_mov_b32 v39, 224\nv_cmp_le_u32 s[60:61], v39, v38\ns_and_b64 vcc, vcc, s[60:61]")
    a(f"v_cndmask_b32 v38, v38, 0, vcc\nv_lshlrev_b32 v38, 6, v38\nv_add_u32 v38, {F_X}, v38")
    a(f"s_or_b32 s59, s{STAG+1}, 15\ns_mov_b32 s58, s{STAG}")
    poll(a, [35, 36, 37, 38], tagmask=True)
    lab = wave0(a)
    a(f"v_mov_b32 v250, {F_EPOCH}\nv_mov_b32 v252, s{STAG}\nv_mov_b32 v253, s{STAG+1}")
    a("s_mov_b64 exec, 1")
    a(f"buffer_store_dwordx2 v[252:253], v250, {sd(SFLG)}, 0 offen sc1")
    a("s_mov_b64 exec, -1")
    a.label(lab)
    a("s_branch L_fin")

def aux_role(a):
    vm = VM(a)
    lskip = a.newlabel("L_nomod")
    lmod = a.newlabel("L_mod")
    a(f"s_cmp_lt_u32 s{S_SLOT}, 21\ns_cbranch_scc1 {lmod}")
    code_prefetch(a, vm)
    tag_and_publish(a)
    a(f"s_branch {lskip}")
    a.label(lmod)
    SW, SC, SO = R0, R1, R2
    srd(a, SW, PWM, D * 6 * D * 2); srd(a, SC, PC, D * 2); srd(a, SO, PWS, 6 * D * 4, WS_MOD)
    a(f"s_lshl_b32 s56, s{S_SLOT}, 8")
    a("v_and_b32 v4, 15, v0\nv_lshrrev_b32 v5, 4, v0")
    a("v_mul_u32_u24 v6, 5376, v5\nv_lshl_add_u32 v6, v4, 4, v6\nv_add_u32 v6, s56, v6")
    a("v_lshlrev_b32 v7, 2, v0")
    a(f"buffer_load_dword v8, v7, {sd(SC)}, 0 offen")
    X = 16
    for i in range(28):
        a(f"s_mov_b32 s57, {i*16*5376}")
        a(f"buffer_load_dwordx4 v[{X+4*i}:{X+4*i+3}], v6, {sd(SW)}, s57 offen")
    code_prefetch(a, vm)
    tag_and_publish(a)
    a("s_waitcnt vmcnt(29)" if cfg.code_prefetch else "s_waitcnt vmcnt(28)")
    unpack(a, 10, 11, 8)
    for r in (10, 11): a(f"v_mul_f32 v{r+2}, {hexf(-1.4426950408889634)}, v{r}")
    a("v_exp_f32 v12, v12\nv_exp_f32 v13, v13\nv_add_f32 v12, 1.0, v12\nv_add_f32 v13, 1.0, v13")
    a("v_rcp_f32 v12, v12\nv_rcp_f32 v13, v13\nv_mul_f32 v10, v10, v12\nv_mul_f32 v11, v11, v13")
    a("v_cvt_pk_bf16_f32 v14, v10, v11")
    unpack(a, 10, 11, 14)
    a("v_lshlrev_b32 v7, 3, v0")
    a("v_cmp_gt_u32 vcc, 224, v0\ns_and_saveexec_b64 s[58:59], vcc")
    a("ds_write_b64 v7, v[10:11]")
    a("s_mov_b64 exec, s[58:59]")
    a("s_waitcnt lgkmcnt(0)\ns_barrier")
    SCV = 128
    a("v_lshlrev_b32 v7, 2, v5")
    for i in range(28): a(f"ds_read_b32 v{SCV+i}, v7 offset:{64*i}")
    ACC = 160
    for e in range(8): a(f"v_mov_b32 v{ACC+e}, 0")
    a("s_waitcnt lgkmcnt(0)")
    for i in range(28):
        if i % 4 == 0: a(f"s_waitcnt vmcnt({max(0, 28 - i - 4) + (1 if cfg.code_prefetch else 0)})")
        for e in range(4):
            t = 10 + 2 * (e & 1)
            unpack(a, t, t + 1, X + 4*i + e)
            sc = SCV + i
            if sc % 2 == 0: pk(a, "fma", ACC + 2*e, t, sc, ACC + 2*e, mods="op_sel_hi:[1,0,1]")
            else: pk(a, "fma", ACC + 2*e, t, sc - 1, ACC + 2*e, mods="op_sel:[0,1,0] op_sel_hi:[1,1,1]")
    a("v_lshlrev_b32 v7, 9, v5\nv_lshl_add_u32 v7, v4, 5, v7")
    a(f"ds_write_b128 v7, v[{ACC}:{ACC+3}] offset:2048")
    a(f"ds_write_b128 v7, v[{ACC+4}:{ACC+7}] offset:2064")
    a("s_waitcnt lgkmcnt(0)\ns_barrier")
    a("v_and_b32 v7, 127, v0\nv_lshlrev_b32 v7, 2, v7")
    for i in range(16): a(f"ds_read_b32 v{16+i}, v7 offset:{2048 + 512*i}")
    a("s_waitcnt lgkmcnt(0)")
    for i in range(1, 16): a(f"v_add_f32 v16, v16, v{16+i}")
    a(f"v_cvt_pk_bf16_f32 v17, v16, v16\nv_and_b32 v16, s{S_MASK}, v17")
    a(f"s_lshl_b32 s56, s{S_SLOT}, 9\nv_add_u32 v7, s56, v7")
    a("v_cmp_gt_u32 vcc, 128, v0\ns_and_saveexec_b64 s[58:59], vcc")
    l2 = a.newlabel("L_ms")
    a(f"s_cbranch_execz {l2}")
    a(f"buffer_store_dword v16, v7, {sd(SO)}, 0 offen sc1")
    a.label(l2)
    a("s_mov_b64 exec, s[58:59]")
    a("s_waitcnt vmcnt(0)\ns_barrier")
    a(f"s_lshl_b32 s57, s{S_SLOT}, 6")
    signal(a, 57, F_M, False)
    a.label(lskip)
    stamp(a, "mod")
    ring_base(a); dma_consts(a)
    srd(a, R3, PQ, SZ_T)
    for l in q_dma(R3): a(l)
    purity_issue(a)
    a("s_waitcnt vmcnt(0)")
    purity_check(a)
    srd(a, R1, PW1, D * F * 2)
    for l in q_reads(): a(l)
    for l in dma_w1(0, R1) + dma_w1(1, R1): a(l)
    a("s_waitcnt lgkmcnt(0)")
    for ks in range(2, 6):
        for l in dma_w1(ks, R1): a(l)
    fm_issue(a)
    ln1_stats(a)
    a("s_waitcnt vmcnt(0)\ns_barrier")
    purity_fetch(a)

def ln1_stats(a):
    lg = LG(a)
    a("v_mov_b32 v16, 0x3f803f80\nv_mov_b32 v17, v16\nv_mov_b32 v18, v16\nv_mov_b32 v19, v16")
    a("v_and_b32 v20, 3, v0")
    a("v_cmp_eq_u32 s[64:65], 1, v20\nv_cmp_eq_u32 s[66:67], 2, v20\nv_cmp_eq_u32 s[68:69], 3, v20")
    a("v_lshrrev_b32 v20, 2, v2\nv_lshl_add_u32 v20, v20, 4, v2\nv_lshlrev_b32 v20, 2, v20")
    for ks in range(14): gram_step(a, QF, ks, 16, 24, 28)
    gram_finish(a, lg, 28, 20)
    a("v_mov_b32 v8, v24\nv_mov_b32 v10, v29")
    ln_scalars(a, 8, 10, 6)

class LG:
    def __init__(self, a): self.a = a; self.q = []
    def op(self, text, tag=None):
        self.a(text); self.q.append(tag)
    def wait(self, tag):
        idx = max(i for i, t in enumerate(self.q) if t == tag)
        n = len(self.q) - 1 - idx
        self.a(f"s_waitcnt lgkmcnt({min(n, 15)})")
    def drain(self):
        self.a("s_waitcnt lgkmcnt(0)"); self.q = []

def tr_addr_nat(a, dst, sel, tmp):
    a(f"v_lshrrev_b32 v{tmp}, 2, v2")
    a(f"v_lshl_add_u32 v{dst}, v3, 3, v{tmp}")
    a(f"v_lshrrev_b32 v{tmp}, 1, v{tmp}")
    a(f"v_and_b32 v{tmp+1}, 1, v3\nv_lshl_or_b32 v{tmp}, v{tmp+1}, 1, v{tmp}")
    a(f"v_xor_b32 v{tmp}, {sel}, v{tmp}\nv_lshlrev_b32 v{tmp}, 5, v{tmp}")
    a(f"v_lshl_add_u32 v{dst}, v{dst}, 7, v{tmp}")
    a(f"v_and_b32 v{tmp}, 3, v2\nv_lshl_add_u32 v{dst}, v{tmp}, 3, v{dst}")
def tr_addr_old(a, dst, sel, tmp):
    a(f"v_lshrrev_b32 v{tmp}, 2, v2\nv_lshl_add_u32 v{dst}, v3, 2, v{tmp}")
    a(f"v_lshrrev_b32 v{tmp+1}, 1, v{dst}\nv_and_b32 v{tmp+1}, 3, v{tmp+1}")
    a(f"v_xor_b32 v{tmp+1}, {sel}, v{tmp+1}\nv_lshlrev_b32 v{tmp+1}, 5, v{tmp+1}")
    a(f"v_lshlrev_b32 v{dst}, 7, v{dst}\nv_add_u32 v{dst}, v{dst}, v{tmp+1}")
    a(f"v_and_b32 v{tmp}, 3, v2\nv_lshl_add_u32 v{dst}, v{tmp}, 3, v{dst}")

def ln_scalars(a, vs, vq, vneg):
    a(f"v_mul_f32 v{vs}, {hexf(1.0/448.0)}, v{vs}\nv_mul_f32 v{vq}, {hexf(1.0/448.0)}, v{vq}")
    a(f"v_fma_f32 v{vq}, -v{vs}, v{vs}, v{vq}\nv_max_f32 v{vq}, 0, v{vq}")
    a(f"v_add_f32 v{vq}, {hexf(1e-5)}, v{vq}\nv_rsq_f32 v{vq}, v{vq}")
    a(f"v_mul_f32 v{vneg}, -v{vs}, v{vq}".replace("v_mul_f32 v", "v_mul_f32_e64 v", 1))

def gram_step(a, frag0, ks, ones, su, gr):
    r = frag0 + 4 * ks
    a(f"{MF} v[{su}:{su+3}], v[{ones}:{ones+3}], v[{r}:{r+3}], {'0' if ks == 0 else f'v[{su}:{su+3}]'}")
    a(f"{MF} v[{gr}:{gr+3}], v[{r}:{r+3}], v[{r}:{r+3}], {'0' if ks == 0 else f'v[{gr}:{gr+3}]'}")
def gram_finish(a, lg, gr, idx):
    a(f"v_cndmask_b32 v{gr}, v{gr}, v{gr+1}, s[64:65]")
    a(f"v_cndmask_b32 v{gr}, v{gr}, v{gr+2}, s[66:67]")
    a(f"v_cndmask_b32 v{gr}, v{gr}, v{gr+3}, s[68:69]")
    lg.op(f"ds_bpermute_b32 v{gr+1}, v{idx}, v{gr}", "bp")
    lg.wait("bp")

def mlp_role(a):
    vm = VM(a); lg = LG(a)
    a.label("L_win2")
    fm_check(a)
    a("s_barrier")
    srd(a, R2, PWS, 6 * D * 4, WS_MOD)
    a("v_lshlrev_b32 v4, 4, v0")
    MV = 208
    for n, row in enumerate((0, 1, 2, 3, 4)):
        a(f"s_movk_i32 s56, {row*448*4}")
        vm.op(f"buffer_load_dwordx4 v[{MV+4*n}:{MV+4*n+3}], v4, {sd(R2)}, s56 offen sc1", "mod")
    for ft in range(4):
        tr_addr_nat(a, 12 + ft, str(ft), 22)
        a(f"v_add_u32 v{12+ft}, s{S_RING}, v{12+ft}")
    def w1_reads(ks):
        so = slot1(ks) * 4096
        for x in range(4):
            lg.op(f"ds_read_b64_tr_b16 a[{16*ks+4*x}:{16*ks+4*x+1}], v{12+x} offset:{so}", f"w1_{ks}")
            lg.op(f"ds_read_b64_tr_b16 a[{16*ks+4*x+2}:{16*ks+4*x+3}], v{12+x} offset:{so+512}", f"w1_{ks}")
    def w1_refill(ks):
        lg.wait(f"w1_{ks - NSLOT}")
        for l in dma_w1(ks, R1): vm.op(l, f"w1_{ks}")
    SU, GR = 24, 28
    w1_reads(0); w1_reads(1)
    w1_refill(6); w1_reads(2)
    w1_refill(7); w1_reads(3)
    vm.wait("mod")
    for e in range(4):
        a(f"v_add_f32 v{MV+4+e}, 1.0, v{MV+4+e}\nv_add_f32 v{MV+16+e}, 1.0, v{MV+16+e}")
    for e in (0, 2):
        pk(a, "mul", MV + 4 + e, MV + 4 + e, MV + 8 + e)
        pk(a, "mul", MV + e, MV + e, MV + 8 + e)
    a(f"v_cvt_pk_bf16_f32 v228, v{MV+16}, v{MV+17}\nv_cvt_pk_bf16_f32 v229, v{MV+18}, v{MV+19}")
    a(f"v_cvt_pk_bf16_f32 v230, v{MV+12}, v{MV+13}\nv_cvt_pk_bf16_f32 v231, v{MV+14}, v{MV+15}")
    unpack(a, MV + 16, MV + 17, 228); unpack(a, MV + 18, MV + 19, 229)
    a("v_lshrrev_b32 v5, 1, v4")
    a("v_cmp_gt_u32 vcc, 112, v0\ns_and_saveexec_b64 s[58:59], vcc")
    a(f"ds_write_b128 v4, v[{MV+4}:{MV+7}] offset:{L_XT}")
    a(f"ds_write_b128 v4, v[{MV}:{MV+3}] offset:{L_XT + 1792}")
    a(f"ds_write_b128 v4, v[{MV+16}:{MV+19}] offset:{L_TAB}")
    a(f"ds_write_b64 v5, v[228:229] offset:{L_TAB + 1792}")
    a(f"ds_write_b64 v5, v[230:231] offset:{L_TAB + 2688}")
    a("s_mov_b64 exec, s[58:59]")
    w1_refill(8); w1_reads(4)
    w1_refill(9); w1_reads(5)
    lg.drain()
    a("s_barrier")
    stamp(a, "tab")
    for ks in (10, 11):
        for l in dma_w1(ks, R1): vm.op(l, f"w1_{ks}")
    a("v_lshlrev_b32 v21, 5, v3")
    TB = [208, 224, 240]
    def tab_ops(ks, base):
        t = TB[ks % 3]; o = base + 128 * ks
        return [(lambda d=d, oo=oo: lg.op(f"ds_read_b128 v[{t+d}:{t+d+3}], v21 offset:{o+oo}", f"tab{ks}"))
                for d, oo in ((0, 0), (4, 16), (8, 1792), (12, 1792 + 16))]
    def w1_read_ops(ks):
        so = slot1(ks) * 4096
        L = []
        for x in range(4):
            L.append(lambda x=x: lg.op(f"ds_read_b64_tr_b16 a[{16*ks+4*x}:{16*ks+4*x+1}], v{12+x} offset:{so}", f"w1_{ks}"))
            L.append(lambda x=x: lg.op(f"ds_read_b64_tr_b16 a[{16*ks+4*x+2}:{16*ks+4*x+3}], v{12+x} offset:{so+512}", f"w1_{ks}"))
        return L
    def g_main(ks):
        t = TB[ks % 3]
        def f(m):
            for e in range(4):
                g = GF + 8 * ks + 2 * e
                unpack(m, g, g + 1, QF + 4 * ks + e)
            for e in range(4):
                g = GF + 8 * ks + 2 * e
                pk(m, "fma", g, g, 10, 6, mods="op_sel_hi:[1,0,0]")
        def f2(m):
            for e in range(4):
                g = GF + 8 * ks + 2 * e
                pk(m, "fma", g, g, t + 2 * e, t + 8 + 2 * e)
        return lines(f), lines(f2)
    for op in tab_ops(0, L_XT) + tab_ops(1, L_XT): op()
    kw_at = {0: 6, 2: 7, 4: 8, 5: 9, 7: 10, 8: 11, 11: 12, 13: 13}
    for ks in range(14):
        side = tab_ops(ks + 2, L_XT) if ks + 2 < 14 else []
        if ks in kw_at:
            kw = kw_at[ks]
            vm.wait(f"w1_{kw}")
            side = side + w1_read_ops(kw)
        m1, m2 = g_main(ks)
        mix(a, m1, side[:8], first=1)
        lg.wait(f"tab{ks}")
        mix(a, m2, side[8:], first=0)
        if ks in kw_at and kw_at[ks] + NSLOT < 14: w1_refill(kw_at[ks] + NSLOT)
    stamp(a, "g")
    srd(a, R0, PWS, SZ_T, WS_YT); srd(a, R1, PW2, D * F * 2); srd(a, R3, PWS, SZ_H, WS_H)
    a("v_min_u32 v4, 55, v1\nv_lshlrev_b32 v4, 6, v4")
    a(f"v_add_u32 v4, {F_B}, v4\nv_add_u32 v5, {56*64}, v4\nv_add_u32 v7, {2*56*64}, v4\nv_add_u32 v8, {3*56*64}, v4")
    a(f"s_lshl_b32 s56, s{S_I}, 7\nv_lshlrev_b32 v9, 12, v{V_DMA_LROW}\nv_add_u32 v9, s56, v9")
    a("v_xor_b32 v11, 64, v201\nv_add_u32 v11, v9, v11\nv_add_u32 v9, v9, v201")
    a(f"v_and_b32 v208, 7, v1\nv_lshlrev_b32 v209, 1, v3\nv_xor_b32 v208, v208, v209\nv_lshlrev_b32 v208, 4, v208")
    a(f"v_mul_u32_u24 v{V_W1A}, 896, v{V_DMA_LROW}\nv_add_u32 v{V_W1A}, v{V_W1A}, v208\ns_lshl_b32 s57, s{S_J}, 7\nv_add_u32 v{V_W1A}, s57, v{V_W1A}")
    a(f"s_mul_i32 s62, s{S_WAVE}, {14*32*896}")
    a(f"s_mul_i32 s63, s{S_WAVE}, 14336")
    tr_addr_nat(a, 22, f"s{S_WAVE}", 12)
    a(f"v_and_b32 v12, 1, v2\nv_mul_u32_u24 v12, 896, v12\nv_lshl_add_u32 v12, v3, 4, v12\nv_add_u32 v12, {L_TAB + 1792}, v12")
    vm.drain(); lg.drain()
    poll(a, [4, 5, 7, 8])
    a("s_barrier")
    stamp(a, "s2")
    a(f"s_mul_i32 s56, s{S_WAVE}, 14\ns_lshl_b32 s57, s56, 15\ns_lshl_b32 s58, s56, 10")
    for n in range(14):
        a(f"s_add_u32 m0, s58, {L_XT + 1024*n}\ns_add_u32 s59, s57, {32768*n}")
        vm.op(f"buffer_load_dwordx4 v{9 if n % 2 == 0 else 11}, {sd(R0)}, s59 offen sc1 lds", "y")
    a(f"s_mul_i32 s60, s{S_I}, 56\ns_lshl_b32 s61, s{S_J}, 3\ns_add_u32 s61, s60, s61\ns_lshl_b32 s59, s{S_WAVE}, 1\ns_add_u32 s61, s61, s59\ns_lshl_b32 s61, s61, 12")
    CB = [208, 212, 216, 220]
    def c_read(ks): lg.op(f"ds_read_b128 v[{CB[ks % 4]}:{CB[ks % 4]+3}], v12 offset:{64*ks}", f"c{ks}")
    for ks in range(3): c_read(ks)
    for ks in range(14):
        if ks + 3 < 14: c_read(ks + 3)
        lg.wait(f"c{ks}")
        for ft in range(4):
            acc = f"a[{224+4*ft}:{227+4*ft}]"
            a(f"{MF} {acc}, a[{16*ks+4*ft}:{16*ks+4*ft+3}], v[{CB[ks % 4]}:{CB[ks % 4]+3}], {'0' if ks == 0 else acc}")
    NS2 = 8
    def w2_slot(n):
        sl = n % NS2
        if sl < 3: return (63, sl * 4096)
        if sl < 5: return (S_RING, 14336 + (sl - 3) * 4096)
        return (S_RING, (sl - 5) * 4096)
    def dma_w2(n):
        L = []
        sb, off = w2_slot(n)
        for qq in range(4):
            L.append(f"s_add_u32 m0, s{sb}, {off + 1024*qq}\ns_add_u32 s71, s62, {(32*n + 8*qq)*896}\n"
                     f"buffer_load_dwordx4 v{V_W1A}, {sd(R1)}, s71 offen lds")
        return L
    a(f"v_lshlrev_b32 v5, 4, v1\nv_add_u32 v7, s{S_RING}, v5")
    vm.wait("y")
    a("s_barrier")
    stamp(a, "y_in")
    touch_w(a, R1, 2, force=cfg.touch2)
    YB = [208, 212, 216, 220]
    AB = [240, 248]
    def y1(ks): y = YB[ks % 4]; lg.op(f"ds_read_b64_tr_b16 v[{y}:{y+1}], v22 offset:{4096*ks}", f"y{ks}")
    def y2(ks): y = YB[ks % 4]; lg.op(f"ds_read_b64_tr_b16 v[{y+2}:{y+3}], v22 offset:{4096*ks+512}", f"y{ks}")
    def a1(ks): t = AB[ks & 1]; lg.op(f"ds_read_b128 v[{t}:{t+3}], v21 offset:{L_TAB + 128*ks}", f"a{ks}")
    def a2(ks): t = AB[ks & 1]; lg.op(f"ds_read_b128 v[{t+4}:{t+7}], v21 offset:{L_TAB + 128*ks + 16}", f"a{ks}")
    if cfg.pretouch:
        a("v_lshlrev_b32 v4, 7, v1")
        vm.op(f"buffer_load_dword v23, v4, {sd(R3)}, s61 offen sc1", "pt")
    for ks in range(3): y1(ks); y2(ks)
    a1(0); a2(0)
    def gram_su(ks, m=a):
        r = QF + 4 * ks
        m(f"{MF} v[{SU}:{SU+3}], v[16:19], v[{r}:{r+3}], {'0' if ks == 0 else f'v[{SU}:{SU+3}]'}")
    def gram_gr(ks, m=a):
        r = QF + 4 * ks
        m(f"{MF} v[{GR}:{GR+3}], v[{r}:{r+3}], v[{r}:{r+3}], {'0' if ks == 0 else f'v[{GR}:{GR+3}]'}")
    ZB = 12
    for ks in range(14):
        lg.wait(f"y{ks}")
        y = YB[ks % 4]; t = AB[ks & 1]
        def f1(m):
            for e in range(4): unpack(m, 224 + 2*e, 225 + 2*e, y + e)
            if ks > 0: gram_su(ks - 1, m)
            for e in range(4): unpack(m, 232 + 2*e, 233 + 2*e, QF + 4 * ks + e)
            if ks > 0: gram_gr(ks - 1, m)
            for e in range(4):
                g = GF + 8 * ks + 2 * e
                pk(m, "fma", g, g, 224 + 2*e, 232 + 2*e)
            for e in range(4):
                g = GF + 8 * ks + 2 * e
                m(f"v_cvt_pk_bf16_f32 v{QF+4*ks+e}, v{g}, v{g+1}")
        side = []
        if ks > 0: side.append(lambda ks=ks: lg.op(f"ds_write_b128 v7, v[{ZB}:{ZB+3}] offset:{1024*(ks-1)}", "zw"))
        if ks + 3 < 14: side += [lambda ks=ks: y1(ks + 3), lambda ks=ks: y2(ks + 3)]
        mix(a, lines(f1), side, first=2)
        lg.wait(f"a{ks}")
        for e in range(4):
            g = GF + 8 * ks + 2 * e
            pk(a, "mul", g, g, t + 2 * e)
        def f2(m):
            for e in range(4):
                g = GF + 8 * ks + 2 * e
                m(f"v_cvt_pk_bf16_f32 v{ZB+e}, v{g}, v{g+1}")
        mix(a, lines(f2), [lambda ks=ks: a1(ks + 1), lambda ks=ks: a2(ks + 1)] if ks + 1 < 14 else [], first=0)
    lg.op(f"ds_write_b128 v7, v[{ZB}:{ZB+3}] offset:{1024*13}", "zw")
    gram_su(13)
    RES = 232
    a(f"s_lshl_b32 s56, s{S_J}, 3")
    gram_gr(13)
    lg.drain()
    a("s_set_gpr_idx_on s56, gpr_idx(SRC0)")
    for e in range(8): a(f"v_mov_b32 v{RES+e}, v{QF+e}")
    a("s_set_gpr_idx_off")
    a("s_barrier")
    stamp(a, "p1")
    stamp(a, "p2")
    ACC = 32
    BF = [96, 112]
    a(f"v_add_u32 v8, {L_RING}, v5\nv_add_u32 v9, {L_RING + 2*RSTR}, v5")
    def b_reads(ks):
        return [f"ds_read_b128 v[{BF[ks & 1]+4*x}:{BF[ks & 1]+4*x+3}], v{8 if x < 2 else 9} offset:{(x & 1)*RSTR + ks*1024}" for x in range(4)]
    STAT, C1, C2 = 128, 144, 160
    L_ST = L_RING + 4 * RSTR
    shadow = {}
    shadow[0] = [f"v_cndmask_b32 v{GR}, v{GR}, v{GR+1}, s[64:65]", f"v_cndmask_b32 v{GR}, v{GR}, v{GR+2}, s[66:67]",
                 f"v_cndmask_b32 v{GR}, v{GR}, v{GR+3}, s[68:69]", f"ds_bpermute_b32 v{GR+1}, v20, v{GR}",
                 f"s_lshl_b32 s56, s{S_WAVE}, 7\ns_add_u32 s56, s56, {L_ST}", "v_lshlrev_b32 v11, 3, v2", "v_add_u32 v10, s56, v11", f"v_add_u32 v11, {L_ST}, v11"]
    shadow[1] = [f"v_mul_f32 v{SU}, {hexf(1.0/448.0)}, v{SU}", f"v_mul_f32 v{GR+1}, {hexf(1.0/448.0)}, v{GR+1}",
                 f"v_fma_f32 v{GR+1}, -v{SU}, v{SU}, v{GR+1}", f"v_max_f32 v{GR+1}, 0, v{GR+1}", f"v_add_f32 v{GR+1}, {hexf(1e-5)}, v{GR+1}",
                 f"v_rsq_f32 v{GR+2}, v{GR+1}", "s_nop 0", f"v_mul_f32_e64 v{GR+3}, -v{SU}, v{GR+2}",
                 f"ds_write_b64 v10, v[{GR+2}:{GR+3}]"]
    shadow[4] = [f"ds_read_b64 v[{STAT+2*tt}:{STAT+2*tt+1}], v11 offset:{128*tt}" for tt in range(4)]
    cb = []
    for ft in range(4):
        for r in range(4):
            cb.append(f"v_accvgpr_read_b32 v{136+r}, a{224+4*ft+r}")
        for r in range(4):
            cb.append(f"v_mov_b32_dpp v{C1+4*ft+r}, v{136+r} row_newbcast:0 row_mask:0xf bank_mask:0xf")
            cb.append(f"v_mov_b32_dpp v{C2+4*ft+r}, v{136+r} row_newbcast:1 row_mask:0xf bank_mask:0xf")
    for n, ks in enumerate(range(5, 13)): shadow[ks] = cb[6*n:6*n+6]
    addr = Asm()
    for nt in range(4):
        tr_addr_old(addr, 12 + nt, str(nt), 140)
        addr(f"v_add_u32 v{224+nt}, s{S_RING}, v{12+nt}\nv_add_u32 v{12+nt}, s63, v{12+nt}")
    al = [x.text for x in addr.ins]
    shadow[2] = al[:len(al)//2]; shadow[3] = al[len(al)//2:]
    w2pre = [(l, f"w2_{n}") for n in range(5) for l in dma_w2(n)]
    for l in b_reads(0): a(l)
    for ks in range(14):
        a("s_waitcnt lgkmcnt(0)")
        if ks == 3: a("s_barrier")
        extra = b_reads(ks + 1) if ks < 13 else []
        sh = list(shadow.get(ks, []))
        c = 0
        for ft in range(4):
            for tt in range(4):
                acc = f"v[{ACC+4*(4*ft+tt)}:{ACC+4*(4*ft+tt)+3}]"
                st = BF[ks & 1]
                a(f"{MF} {acc}, a[{16*ks+4*ft}:{16*ks+4*ft+3}], v[{st+4*tt}:{st+4*tt+3}], {'0' if ks == 0 else acc}")
                if extra: a(extra.pop(0))
                elif sh:
                    a(sh.pop(0))
                    if len(sh) > 15 - c and sh: a(sh.pop(0))
                if c in (6, 12) and w2pre and ks >= 1:
                    l, tg = w2pre.pop(0); vm.op(l, tg)
                c += 1
        while sh: a(sh.pop(0))
    stamp(a, "g1")
    a("s_barrier")
    def w2_read_ops(n):
        sb, off = w2_slot(n)
        base = 12 if sb == 63 else 224
        L = []
        for x in range(4):
            L.append(lambda x=x: lg.op(f"ds_read_b64_tr_b16 a[{16*n+4*x}:{16*n+4*x+1}], v{base+x} offset:{off}", f"w2_{n}"))
            L.append(lambda x=x: lg.op(f"ds_read_b64_tr_b16 a[{16*n+4*x+2}:{16*n+4*x+3}], v{base+x} offset:{off+2048}", f"w2_{n}"))
        return L
    dq = [(l, f"w2_{n}") for n in (5, 6, 7) for l in dma_w2(n)]
    a(f"s_mov_b32 s64, {hexf(-1.4426950408889634)}\ns_mov_b32 s65, s64")
    HO = 96
    for kl in range(2):
        for tt in range(4):
            o = HO + 4 * (kl * 4 + tt)
            xs = [ACC + 4 * (4 * (2 * kl + (e >> 1)) + tt) + 2 * (e & 1) for e in range(4)]
            cs = [4 * (2 * kl + (e >> 1)) + 2 * (e & 1) for e in range(4)]
            E = [180, 182, 184, 186]
            st = STAT + 2 * tt
            for e in range(4):
                a(f"v_pk_fma_f32 v[{E[e]}:{E[e]+1}], v[{C1+cs[e]}:{C1+cs[e]+1}], v[{st}:{st+1}], v[{C2+cs[e]}:{C2+cs[e]+1}] op_sel:[0,1,0] op_sel_hi:[1,1,1]")
            for e in range(4):
                a(f"v_pk_fma_f32 v[{xs[e]}:{xs[e]+1}], v[{xs[e]}:{xs[e]+1}], v[{st}:{st+1}], v[{E[e]}:{E[e]+1}] op_sel_hi:[1,0,1]")
            for e in range(4): a(f"v_pk_mul_f32 v[{E[e]}:{E[e]+1}], v[{xs[e]}:{xs[e]+1}], s[64:65]")
            for e in range(4): a(f"v_exp_f32 v{E[e]}, v{E[e]}\nv_exp_f32 v{E[e]+1}, v{E[e]+1}")
            if dq: vm.op(*dq.pop(0))
            for e in range(4): a(f"v_pk_add_f32 v[{E[e]}:{E[e]+1}], v[{E[e]}:{E[e]+1}], 1.0 op_sel_hi:[1,0]")
            for e in range(4): a(f"v_rcp_f32 v{E[e]}, v{E[e]}\nv_rcp_f32 v{E[e]+1}, v{E[e]+1}")
            if dq and (kl * 4 + tt) < 4: vm.op(*dq.pop(0))
            for e in range(4): pk(a, "mul", E[e], E[e], xs[e])
            for e in range(4): a(f"v_cvt_pk_bf16_f32 v{o+e}, v{E[e]}, v{E[e]+1}")
    assert not dq
    lg_ = a.newlabel("L_hg"); ld = a.newlabel("L_hd")
    a(f"s_cmp_eq_u32 s{S_PURE}, 0\ns_cbranch_scc1 {lg_}")
    for pol, nxt in (("", ld), ("sc1", None)):
        for fr in range(8):
            a(f"s_add_u32 s59, s61, {fr*1024}")
            a(f"buffer_store_dwordx4 v[{HO+4*fr}:{HO+4*fr+3}], v5, {sd(R3)}, s59 offen {pol}")
        if nxt:
            a(f"s_branch {nxt}")
            a.label(lg_)
    a.label(ld)
    vm.q += ["hst"] * 8
    stamp(a, "h_st")
    vm.wait("w2_4")
    for n in range(5):
        for op in w2_read_ops(n): op()
    vm.wait("hst")
    a("s_barrier")
    a(f"s_mul_i32 s57, s{S_I}, 7\ns_add_u32 s57, s57, s{S_J}\ns_lshl_b32 s57, s57, 6")
    signal(a, 57, F_C, True)
    for n in (5, 6, 7):
        for op in w2_read_ops(n): op()
    lg.drain()
    lw = a.newlabel("L_w2late")
    a(f"s_cmp_eq_u32 s{S_WAVE}, 0\ns_cbranch_scc1 {lw}")
    for n in range(8, 14):
        for l in dma_w2(n): a(l)
    a.label(lw)
    a(f"v_min_u32 v4, 6, v1\ns_mul_i32 s56, s{S_I}, 7\nv_add_u32 v4, s56, v4\nv_lshlrev_b32 v4, 6, v4\nv_add_u32 v4, {F_C}, v4")
    poll(a, [4])
    a("s_barrier")
    stamp(a, "s3")
    vm.q = []
    a(f"v_mov_b32 v228, v{V_W1A}")
    a(f"s_mul_i32 s58, s{S_WAVE}, 14\ns_add_u32 s60, s60, s58\ns_lshl_b32 s60, s60, 12")
    HB = 96; DEP = 8; AHEAD = 3
    def h_loads(n):
        sl = n % DEP
        return [f"s_add_u32 s59, s60, {n*4096 + 1024*tt}\n"
                f"buffer_load_dwordx4 v[{HB+16*sl+4*tt}:{HB+16*sl+4*tt+3}], v5, {sd(R3)}, s59 offen sc1" for tt in range(4)]
    for n in range(AHEAD):
        for l in h_loads(n): vm.op(l, f"h{n}")
    for n in range(14):
        vm.wait(f"h{n}")
        sl = n % DEP
        nxt = h_loads(n + AHEAD) if n + AHEAD < 14 else []
        rd = w2_read_ops(n + 4) if 4 <= n < 10 else []
        if n >= 8: lg.wait(f"w2_{n}")
        c = 0
        for nt in range(4):
            for tt in range(4):
                acc = f"v[{ACC+4*(4*nt+tt)}:{ACC+4*(4*nt+tt)+3}]"
                a(f"{MF} {acc}, a[{16*n+4*nt}:{16*n+4*nt+3}], v[{HB+16*sl+4*tt}:{HB+16*sl+4*tt+3}], {'0' if n == 0 else acc}")
                if c % 4 == 0 and nxt: vm.op(nxt.pop(0), f"h{n+AHEAD}")
                elif rd: rd.pop(0)()
                if c == 14 and n < 6:
                    l0 = a.newlabel("L_w2w0")
                    a(f"s_cmp_lg_u32 s{S_WAVE}, 0\ns_cbranch_scc1 {l0}")
                    for l in dma_w2(8 + n): a(l.replace(f"v{V_W1A},", "v228,"))
                    a.label(l0)
                c += 1
    stamp(a, "g2")
    srd(a, R2, PWS, 6 * D * 4, WS_MOD); srd(a, R0, POUT, SZ_T)
    a(f"s_lshl_b32 s56, s{S_J}, 8\ns_add_u32 s56, s56, {5*448*4}\nv_lshlrev_b32 v7, 5, v3\nv_add_u32 v7, s56, v7")
    GB = 208
    for ps in range(2):
        vm.op(f"buffer_load_dwordx4 v[{GB+8*ps}:{GB+8*ps+3}], v7, {sd(R2)}, 0 offen offset:{128*ps} sc1", "gb")
        vm.op(f"buffer_load_dwordx4 v[{GB+8*ps+4}:{GB+8*ps+7}], v7, {sd(R2)}, 0 offen offset:{128*ps+16} sc1", "gb")
    a(f"v_mul_u32_u24 v8, 272, v2\nv_lshl_add_u32 v9, v3, 4, v8\nv_add_u32 v9, s{S_RING}, v9")
    for nt in range(4):
        for tt in range(4):
            r = ACC + 4 * (4 * nt + tt)
            a(f"ds_write_b128 v9, v[{r}:{r+3}] offset:{tt*4352 + 64*nt}")
    a(f"s_mul_i32 s56, s{S_WAVE}, {16*272}\ns_add_u32 s56, s56, {L_RING}")
    a("v_lshl_add_u32 v10, v3, 5, v8\nv_add_u32 v10, s56, v10")
    a(f"v_add_u32 v11, {2*RSTR}, v10")
    a(f"s_lshl_b32 s56, s{S_I}, 6\ns_lshl_b32 s57, s{S_WAVE}, 4\ns_add_u32 s56, s56, s57\ns_mul_i32 s56, s56, 896\ns_lshl_b32 s57, s{S_J}, 7\ns_add_u32 s56, s56, s57")
    a("v_mul_u32_u24 v12, 896, v2\nv_lshl_add_u32 v12, v3, 4, v12\nv_add_u32 v12, s56, v12")
    a("s_waitcnt lgkmcnt(0)\ns_barrier")
    P = 96
    for ps in range(2):
        for w in range(4):
            for hh in range(2):
                r = P + 32 * ps + 8 * w + 4 * hh
                a(f"ds_read_b128 v[{r}:{r+3}], v{10 if w < 2 else 11} offset:{(w & 1)*RSTR + 128*ps + 16*hh}")
    vm.wait("gb")
    for ps in range(2):
        a(f"s_waitcnt lgkmcnt({8 if ps == 0 else 0})")
        b = P + 32 * ps
        for e in range(4):
            x = b + 2 * e
            pk(a, "add", x, x, x + 8)
            pk(a, "add", x + 16, x + 16, x + 24)
        for e in range(4):
            x = b + 2 * e
            pk(a, "add", x, x, x + 16)
            unpack(a, 160 + 2*e, 161 + 2*e, RES + 4 * ps + e)
        for e in range(4):
            x = b + 2 * e
            pk(a, "fma", x, x, GB + 8 * ps + 2 * e, 160 + 2*e)
        for e in range(4):
            x = b + 2 * e
            a(f"v_cvt_pk_bf16_f32 v{168+4*ps+e}, v{x}, v{x+1}")
        a(f"buffer_store_dwordx4 v[{168+4*ps}:{168+4*ps+3}], v12, {sd(R0)}, 0 offen offset:{64*ps}")
    stamp(a, "end")

def gen(a):
    prologue(a)
    a(f"s_cmp_eq_u32 s{S_X}, 7\ns_cbranch_scc1 L_aux")
    main_role(a)
    a.label("L_aux")
    aux_role(a)
    mlp_role(a)
    a.label("L_fin")
    stamp_flush(a)
    a.label("L_end")

def build():
    hdr = open("cdna_kernels/" + NAME + ".s.ref").read().split("; Override launch")[0]
    a = Asm(); gen(a); n = a.hazards()
    label = NAME + "_kernel"
    out = hdr + f"; @launch grid=(256,1,1) block=(256,1,1) lds={LDS_BYTES}\n"
    out += f""".amdgcn_target "amdgcn-amd-amdhsa--gfx950"
.text
.globl {label}
.p2align 8
.type {label},@function
{label}:
{a.text()}
    s_endpgm
L_code_end:
.section .rodata,"a"
.p2align 6
.amdhsa_kernel {label}
  .amdhsa_next_free_vgpr 512
  .amdhsa_next_free_sgpr 100
  .amdhsa_accum_offset 256
  .amdhsa_group_segment_fixed_size 0
  .amdhsa_kernarg_size 112
  .amdhsa_user_sgpr_count 2
  .amdhsa_user_sgpr_kernarg_segment_ptr 1
  .amdhsa_system_sgpr_workgroup_id_x 1
.end_amdhsa_kernel
"""
    return out

if __name__ == "__main__":
    import argparse
    ap = argparse.ArgumentParser()
    ap.add_argument("out"); ap.add_argument("--stamps", default=""); ap.add_argument("--nocpf", action="store_true")
    ap.add_argument("--nopt", action="store_true"); ap.add_argument("--glob", action="store_true"); ap.add_argument("--cyc", action="store_true"); ap.add_argument("--touch", action="store_true"); ap.add_argument("--ptkv", type=int, default=1); ap.add_argument("--nodma", action="store_true"); ap.add_argument("--notouch2", action="store_true"); ap.add_argument("--wsbase", default="0"); ap.add_argument("--probe", type=int, default=0); ap.add_argument("--probe_wg", type=int, default=0)
    g = ap.parse_args()
    if g.stamps: cfg.stamps = {n: i for i, n in enumerate(g.stamps.split(","))}
    cfg.code_prefetch = not g.nocpf; cfg.pretouch = not g.nopt; cfg.force_global = g.glob; cfg.cyc = g.cyc; cfg.touch = g.touch; cfg.pretouch_kv = g.ptkv; cfg.exp_nodma = g.nodma; cfg.touch2 = not g.notouch2; cfg.probe = g.probe; cfg.probe_wg = g.probe_wg
    b = int(g.wsbase, 0)
    WS_KVT += b; WS_YT += b; WS_MOD += b; WS_FLG += b; WS_H += b
    t = build()
    open(g.out, "w").write(t)
    print("written", len(t), "bytes,", t.count("\n"), "lines")
```
